```python
import torch

def _softmax(x, axis=-1):
    return torch.softmax(x, dim=axis)
def _gelu(x):
    return torch.nn.functional.gelu(x, approximate="tanh")
def _silu(x):
    return torch.nn.functional.silu(x)
def _sigmoid(x):
    return torch.sigmoid(x)
def _layernorm(x, axis=-1, eps=1e-5):
    m = x.mean(dim=axis, keepdim=True)
    v = x.var(dim=axis, keepdim=True, unbiased=False)
    return (x - m) / torch.sqrt(v + eps)
def _scatter_add(tgt, idx, src, axis=0):
    return tgt.clone().index_add_(axis, idx, src)
def _segment_sum(src, seg, n):
    out = torch.zeros((n,) + src.shape[1:], dtype=src.dtype)
    return out.index_add_(0, seg, src)
def _pad(x, pw):
    flat = tuple(v for pair in reversed(pw) for v in pair)
    return torch.nn.functional.pad(x, flat)

kernel_name = 'parallel_sum__softmax_full_mha__glu_gated_glu__prompt'

def setup_inputs():

    _w = (lambda a: (lambda t: t.to(torch.bfloat16) if t.is_floating_point() else t)(torch.as_tensor(a)))
    def _A_setup():
        B, S, D = 1, 2048, 1024
        return {
            "x": _w((lambda *s: torch.randn(*s, dtype=torch.bfloat16) * 0.05)(B, S, D)),
            "wqkv": _w((lambda *s: torch.randn(*s, dtype=torch.bfloat16) * 0.05)(D, 3 * D)),
            "wo": _w((lambda *s: torch.randn(*s, dtype=torch.bfloat16) * 0.05)(D, D)),
        }
    _A_in = _A_setup()

    def _B_setup():
        B, S, D, F = 1, 2048, 1024, 3584
        return {
            "x": _w((lambda *s: torch.randn(*s, dtype=torch.bfloat16) * 0.05)(B, S, D)),
            "w_gate": _w((lambda *s: torch.randn(*s, dtype=torch.bfloat16) * 0.05)(D, F)),
            "w_up": _w((lambda *s: torch.randn(*s, dtype=torch.bfloat16) * 0.05)(D, F)),
            "w_down": _w((lambda *s: torch.randn(*s, dtype=torch.bfloat16) * 0.05)(F, D)),
        }
    _B_in = _B_setup()

    return {
        "A_x": _A_in["x"],
        "A_wqkv": _A_in["wqkv"],
        "A_wo": _A_in["wo"],
        "B_x": _B_in["x"],
        "B_w_gate": _B_in["w_gate"],
        "B_w_up": _B_in["w_up"],
        "B_w_down": _B_in["w_down"],
    }

def reference(A_x, A_wqkv, A_wo, B_x, B_w_gate, B_w_up, B_w_down):
    def _A_ref(x, wqkv, wo):
        B, S, D = x.shape
        H = 32; Dh = D // H
        qkv = (lambda x, *d: x.permute(*d))((x @ wqkv).reshape(B, S, 3, H, Dh), 2, 0, 3, 1, 4)
        q, k, v = qkv[0], qkv[1], qkv[2]
        scale = Dh ** -0.5
        scores = torch.einsum("bhqd,bhkd->bhqk", q, k) * scale
        p = _softmax(scores, axis=-1)
        o = torch.einsum("bhqk,bhkd->bhqd", p, v)
        return (lambda x, *d: x.permute(*d))(o, 0, 2, 1, 3).reshape(B, S, D) @ wo

    def _B_ref(x, w_gate, w_up, w_down):
        g = torch.einsum("bsd,df->bsf", x, w_gate)
        u = torch.einsum("bsd,df->bsf", x, w_up)
        h = _sigmoid(g) * u
        return torch.einsum("bsf,fd->bsd", h, w_down)

    x = A_x
    xn = _layernorm(x, axis=-1)
    return x + _A_ref(xn, A_wqkv, A_wo) + _B_ref(xn, B_w_gate, B_w_up, B_w_down)
```

```python
import sys
def kernel(name, body, iters, grid, block, lds=0, info="", pre="", vgpr=256, acc=256):
    s = f"""; @launch grid=({grid},1,1) block=({block},1,1) lds={lds}
.amdgcn_target "amdgcn-amd-amdhsa--gfx950"
.text
.globl mb_kernel
.p2align 8
.type mb_kernel,@function
mb_kernel:
    s_load_dwordx2 s[4:5], s[0:1], 0
    s_load_dwordx2 s[6:7], s[0:1], 56
    s_waitcnt lgkmcnt(0)
    s_mov_b32 s8, s4
    s_mov_b32 s9, s5
    s_mov_b32 s10, 0x4000000
    s_mov_b32 s11, 0x00020000
    s_mov_b32 s12, s6
    s_mov_b32 s13, s7
    s_mov_b32 s14, 0x1000000
    s_mov_b32 s15, 0x00020000
    v_lshlrev_b32 v1, 4, v0
    v_and_b32 v2, 63, v0
    v_lshlrev_b32 v2, 4, v2
"""
    for r in range(3, 200):
        s += f"    v_mov_b32 v{r}, 1.0\n"
    s += pre
    s += f"""    s_mov_b32 s20, {iters}
    s_barrier
    s_memtime s[16:17]
    s_memrealtime s[22:23]
    s_waitcnt lgkmcnt(0)
L_loop:
{body}
    s_sub_u32 s20, s20, 1
    s_cmp_lg_u32 s20, 0
    s_cbranch_scc1 L_loop
    s_waitcnt vmcnt(0) lgkmcnt(0)
    s_nop 15
    s_memtime s[18:19]
    s_memrealtime s[24:25]
    s_waitcnt lgkmcnt(0)
    s_sub_u32 s18, s18, s16
    s_sub_u32 s24, s24, s22
    v_lshrrev_b32 v3, 6, v0
    s_mul_i32 s21, s2, {block//64}
    v_add_u32 v3, s21, v3
    v_lshlrev_b32 v3, 3, v3
    v_mov_b32 v4, s18
    v_mov_b32 v5, s24
    v_and_b32 v6, 63, v0
    v_cmp_eq_u32 vcc, 0, v6
    s_and_saveexec_b64 s[26:27], vcc
    buffer_store_dwordx2 v[4:5], v3, s[12:15], 0 offen
    s_waitcnt vmcnt(0)
    s_endpgm
.section .rodata,"a"
.p2align 6
.amdhsa_kernel mb_kernel
  .amdhsa_next_free_vgpr {vgpr}
  .amdhsa_next_free_sgpr 102
  .amdhsa_accum_offset {acc}
  .amdhsa_group_segment_fixed_size 0
  .amdhsa_kernarg_size 80
  .amdhsa_user_sgpr_count 2
  .amdhsa_user_sgpr_kernarg_segment_ptr 1
  .amdhsa_system_sgpr_workgroup_id_x 1
.end_amdhsa_kernel
"""
    open(name, "w").write(s)

if __name__ == "__main__":
    files = []
    def add(tag, body, n_items, blocks=(256, 512), iters=200, **kw):
        for blk in blocks:
            fn = f"mb_{tag}_{blk}.s"
            kernel(fn, body, iters, 1, blk, info=f"{tag} items/iter={n_items} iters={iters}", **kw)
            files.append(fn)
    add("exp", "\n".join(f"    v_exp_f32 v{10+i}, v{100+i}" for i in range(64)), 64)
    add("fma", "\n".join(f"    v_fma_f32 v{10+i}, v{100+i}, v{100+i}, v{100+i}" for i in range(64)), 64)
    add("add", "\n".join(f"    v_add_f32 v{10+i}, v{100+i}, v{100+i}" for i in range(64)), 64)
    add("pkmul", "\n".join(f"    v_pk_mul_f32 v[{10+2*i}:{11+2*i}], v[{100+2*i}:{101+2*i}], v[{100+2*i}:{101+2*i}]" for i in range(32)), 32)
    add("pkadd", "\n".join(f"    v_pk_add_f32 v[{10+2*i}:{11+2*i}], v[{100+2*i}:{101+2*i}], v[{100+2*i}:{101+2*i}]" for i in range(32)), 32)
    add("cvt", "\n".join(f"    v_cvt_pk_bf16_f32 v{10+i}, v{100+i}, v{101+i}" for i in range(64)), 64)
    add("max3", "\n".join(f"    v_max3_f32 v{10+i}, v{100+i}, v{101+i}, v{102+i}" for i in range(64)), 64)
    add("expadd", "\n".join(f"    v_exp_f32 v{10+i}, v{100+i}\n    v_add_f32 v{50+i}, v{140+i}, v{140+i}" for i in range(32)), 64)
    add("exp2add", "\n".join(f"    v_exp_f32 v{10+i}, v{100+i}\n    v_exp_f32 v{30+i}, v{120+i}\n    v_add_f32 v{50+i}, v{140+i}, v{140+i}" for i in range(20)), 60)
    add("mfma32", "\n".join(f"    v_mfma_f32_32x32x16_bf16 v[{16*(i%4)+16}:{16*(i%4)+31}], v[100:103], v[104:107], v[{16*(i%4)+16}:{16*(i%4)+31}]" for i in range(16)), 16)
    add("mfma16", "\n".join(f"    v_mfma_f32_16x16x32_bf16 v[{4*(i%4)+16}:{4*(i%4)+19}], v[100:103], v[104:107], v[{4*(i%4)+16}:{4*(i%4)+19}]" for i in range(16)), 16)
    for k in (2, 3, 4, 5, 6):
        b = []
        for i in range(16):
            b.append(f"    v_mfma_f32_32x32x16_bf16 v[{16*(i%4)+16}:{16*(i%4)+31}], v[100:103], v[104:107], v[{16*(i%4)+16}:{16*(i%4)+31}]")
            for j in range(k):
                b.append(f"    v_exp_f32 v{110+j+8*(i%4)}, v{150+j}")
        add(f"mfma_exp{k}", "\n".join(b), 16)
    b = []
    for i in range(4):
        for t in range(4):
            b.append(f"    v_mfma_f32_32x32x16_bf16 v[{16*t+16}:{16*t+31}], v[100:103], v[104:107], v[{16*t+16}:{16*t+31}]")
            for j in range(4):
                b.append(f"    v_exp_f32 v{110+j+8*t}, v{150+j}")
            b.append(f"    v_cvt_pk_bf16_f32 v{160+2*t}, v170, v171")
            b.append(f"    v_cvt_pk_bf16_f32 v{161+2*t}, v170, v171")
            if t % 2 == 1:
                b.append(f"    v_mfma_f32_16x16x32_bf16 v[{80+4*(t//2)}:{83+4*(t//2)}], v[100:103], v[104:107], v[{80+4*(t//2)}:{83+4*(t//2)}]")
    add("attmix", "\n".join(b), 4)
    b = []
    for i in range(4):
        for t in range(4):
            b.append(f"    v_mfma_f32_32x32x16_bf16 v[{16*t+16}:{16*t+31}], v[100:103], v[104:107], v[{16*t+16}:{16*t+31}]")
            for j in range(4):
                b.append(f"    v_exp_f32 v{110+j+8*t}, v{150+j}")
            b.append(f"    v_cvt_pk_bf16_f32 v{160+2*t}, v170, v171")
            b.append(f"    v_cvt_pk_bf16_f32 v{161+2*t}, v170, v171")
            b.append(f"    v_pk_add_f32 v[{180+2*t}:{181+2*t}], v[{180+2*t}:{181+2*t}], v[172:173]")
            b.append(f"    v_pk_add_f32 v[{190+2*t}:{191+2*t}], v[{190+2*t}:{191+2*t}], v[172:173]")
    add("attmix_pkadd", "\n".join(b), 4)
    print(" ".join(files))
```

```python
from mb_gen import kernel
files = []
def pre_rand(nload):
    s = "    s_lshl_b32 s30, s2, 16\n"
    for i in range(nload):
        s += f"    buffer_load_dwordx4 v[{8+4*i}:{11+4*i}], v1, s[8:11], s30 offen\n    s_add_u32 s30, s30, 4096\n"
    s += "    s_waitcnt vmcnt(0)\n"
    for r in range(256):
        s += f"    v_accvgpr_write_b32 a{r}, 0\n"
    for r in range(128, 256):
        s += f"    v_mov_b32 v{r}, 0\n"
    return s
def acc(i, n):
    b = i * n
    if b < 256: return f"a[{b}:{b+n-1}]"
    b = b - 256 + 128
    return f"v[{b}:{b+n-1}]"
def fr(i): return f"v[{8+4*i}:{11+4*i}]"
def gen(tag, body, nm, cyc):
    fn = f"mb_{tag}.s"
    kernel(fn, "\n".join(body), 64, 256, 256, info=f"{tag} mfma-cycles/iter={cyc} iters=64", pre=pre_rand(28), vgpr=512, acc=256)
    files.append(fn)
b = []
for s in range(2):
    for j in range(10):
        for t in range(2):
            b.append(f"    v_mfma_f32_32x32x16_bf16 {acc(j*2+t,16)}, {fr(s*12+j)}, {fr(s*12+10+t)}, {acc(j*2+t,16)}")
gen("m32_10x2", b, 40, 1280)
b = []
for s in range(2):
    for t in range(2):
        for j in range(10):
            b.append(f"    v_mfma_f32_32x32x16_bf16 {acc(j*2+t,16)}, {fr(s*12+j)}, {fr(s*12+10+t)}, {acc(j*2+t,16)}")
gen("m32_10x2_bmaj", b, 40, 1280)
b = []
for s in range(2):
    for j in range(5):
        for t in range(4):
            b.append(f"    v_mfma_f32_32x32x16_bf16 {acc(j*4+t,16)}, {fr(s*12+j)}, {fr(s*12+5+t)}, {acc(j*4+t,16)}")
gen("m32_5x4", b, 40, 1280)
b = []
for j in range(10):
    for t in range(2):
        for s in range(2):
            b.append(f"    v_mfma_f32_32x32x16_bf16 {acc(j*2+t,16)}, {fr(s*12+j)}, {fr(s*12+10+t)}, {acc(j*2+t,16)}")
gen("m32_chain2", b, 40, 1280)
b = []
for j in range(20):
    for t in range(4):
        b.append(f"    v_mfma_f32_16x16x32_bf16 {acc(j*4+t,4)}, {fr(j)}, {fr(20+t)}, {acc(j*4+t,4)}")
gen("m16_amaj", b, 80, 1280)
b = []
for t in range(4):
    for j in range(20):
        b.append(f"    v_mfma_f32_16x16x32_bf16 {acc(j*4+t,4)}, {fr(j)}, {fr(20+t)}, {acc(j*4+t,4)}")
gen("m16_bmaj", b, 80, 1280)
b = []
for j in range(20):
    for t in (range(4) if j % 2 == 0 else range(3, -1, -1)):
        b.append(f"    v_mfma_f32_16x16x32_bf16 {acc(j*4+t,4)}, {fr(j)}, {fr(20+t)}, {acc(j*4+t,4)}")
gen("m16_snake", b, 80, 1280)
b = []
for j in range(10):
    for t in (range(8) if j % 2 == 0 else range(7, -1, -1)):
        b.append(f"    v_mfma_f32_16x16x32_bf16 {acc(j*8+t,4)}, {fr(j)}, {fr(10+t)}, {acc(j*8+t,4)}")
gen("m16_10x8", b, 80, 1280)
b = []
for j in range(20):
    for t in range(4):
        b.append(f"    v_mfma_f32_16x16x32_bf16 {acc(j*4+t,4)}, {fr((j*4+t)%13)}, {fr(13+(j*4+t)%11)}, {acc(j*4+t,4)}")
gen("m16_norepeat", b, 80, 1280)
print(" ".join(files))
```

```python
from mb_gen import kernel
files = []
def add(tag, body, n, blk=256, iters=200):
    fn = f"mb_{tag}.s"; kernel(fn, body, iters, 1, blk, info=f"{tag} items/iter={n} iters={iters}"); files.append(fn)
add("smf16", "\n".join(f"    v_smfmac_f32_16x16x64_bf16 v[{4*(i%4)+16}:{4*(i%4)+19}], v[100:103], v[104:111], v112" for i in range(16)), 16)
add("smf16chain", "\n".join(f"    v_smfmac_f32_16x16x64_bf16 v[16:19], v[100:103], v[104:111], v112" for i in range(16)), 16)
add("smf16add2", "\n".join(f"    v_smfmac_f32_16x16x64_bf16 v[{4*(i%4)+16}:{4*(i%4)+19}], v[100:103], v[104:111], v112\n    v_add_f32 v120, v121, v122\n    v_add_f32 v123, v121, v122" for i in range(16)), 16)
add("smf16add4", "\n".join(f"    v_smfmac_f32_16x16x64_bf16 v[{4*(i%4)+16}:{4*(i%4)+19}], v[100:103], v[104:111], v112\n    v_add_f32 v120, v121, v122\n    v_add_f32 v123, v121, v122\n    v_add_f32 v124, v121, v122\n    v_add_f32 v125, v121, v122" for i in range(16)), 16)
add("m16add4", "\n".join(f"    v_mfma_f32_16x16x32_bf16 v[{4*(i%4)+16}:{4*(i%4)+19}], v[100:103], v[104:107], v[{4*(i%4)+16}:{4*(i%4)+19}]\n    v_add_f32 v120, v121, v122\n    v_add_f32 v123, v121, v122\n    v_add_f32 v124, v121, v122\n    v_add_f32 v125, v121, v122" for i in range(16)), 16)
add("m4", "\n".join(f"    v_mfma_f32_4x4x4_16b_bf16 v[{4*(i%4)+16}:{4*(i%4)+19}], v[100:101], v[104:105], v[{4*(i%4)+16}:{4*(i%4)+19}]" for i in range(16)), 16)
add("m4add4", "\n".join(f"    v_mfma_f32_4x4x4_16b_bf16 v[{4*(i%4)+16}:{4*(i%4)+19}], v[100:101], v[104:105], v[{4*(i%4)+16}:{4*(i%4)+19}]\n    v_add_f32 v120, v121, v122\n    v_add_f32 v123, v121, v122\n    v_add_f32 v124, v121, v122\n    v_add_f32 v125, v121, v122" for i in range(16)), 16)
print(" ".join(files))
s = """; @launch grid=(1,1,1) block=(64,1,1) lds=0
.amdgcn_target "amdgcn-amd-amdhsa--gfx950"
.text
.globl mb_kernel
.p2align 8
.type mb_kernel,@function
mb_kernel:
    s_load_dwordx2 s[4:5], s[0:1], 0
    s_load_dwordx2 s[6:7], s[0:1], 56
    s_waitcnt lgkmcnt(0)
    s_mov_b32 s8, s4
    s_mov_b32 s9, s5
    s_mov_b32 s10, 0x1000000
    s_mov_b32 s11, 0x00020000
    s_mov_b32 s12, s6
    s_mov_b32 s13, s7
    s_mov_b32 s14, 0x1000000
    s_mov_b32 s15, 0x00020000
    v_lshlrev_b32 v1, 4, v0
    s_mov_b32 s20, 0
    s_mov_b32 s21, 0
    s_mov_b32 s22, 64
L_loop:
    buffer_load_dwordx4 v[8:11], v1, s[8:11], s20 offen
    buffer_load_dwordx4 v[12:15], v1, s[8:11], s20 offen offset:1024
    buffer_load_dwordx4 v[16:19], v1, s[8:11], s20 offen offset:2048
    buffer_load_dwordx4 v[20:23], v1, s[8:11], s20 offen offset:3072
    v_mov_b32 v24, 0
    v_mov_b32 v25, 0
    v_mov_b32 v26, 0
    v_mov_b32 v27, 0
    s_waitcnt vmcnt(0)
    v_smfmac_f32_16x16x64_bf16 v[24:27], v[8:11], v[12:19], v20
    s_nop 7
    s_nop 7
    s_nop 7
    buffer_store_dwordx4 v[24:27], v1, s[12:15], s21 offen
    s_waitcnt vmcnt(0)
    s_add_u32 s20, s20, 4096
    s_add_u32 s21, s21, 1024
    s_sub_u32 s22, s22, 1
    s_cmp_lg_u32 s22, 0
    s_cbranch_scc1 L_loop
    s_endpgm
.section .rodata,"a"
.p2align 6
.amdhsa_kernel mb_kernel
  .amdhsa_next_free_vgpr 64
  .amdhsa_next_free_sgpr 102
  .amdhsa_accum_offset 64
  .amdhsa_group_segment_fixed_size 0
  .amdhsa_kernarg_size 80
  .amdhsa_user_sgpr_count 2
  .amdhsa_user_sgpr_kernarg_segment_ptr 1
  .amdhsa_system_sgpr_workgroup_id_x 1
.end_amdhsa_kernel
"""
open("mb_smflay.s", "w").write(s)
```

```python
from gen_common import *
from gen_g1 import loop_emit

GSLOT = 32768
KVBASE = 4 * GSLOT
KSLOT = 8192
S3_LDS = KVBASE + 4 * KSLOT

def emit_items(a, items):
    for x in items:
        if x[0] == "ins": a(x[1])
        elif x[2] is not None: a(f"s_waitcnt {x[1]}({x[2]})")

RQ = 16
RS = 32
RM = 64
RO = 96
RL = 128
RP = 136
RK = 152
RV = 168
R1 = 184
RLV = 188

def att_body(a, o):
    prof = o.get("prof", False)
    rs = o.get("rs", 2)
    vm = Counter(63); lg = Counter(15)
    a("v_lshlrev_b32 v2, 4, v1")
    a(f"v_add_u32 v3, {KVBASE}, v2")
    a("s_lshl_b32 s58, s56, 6")
    a("s_lshl_b32 s59, s57, 3")
    a("s_lshl_b32 s60, s28, 1")
    a("s_add_u32 s59, s59, s60")
    a("s_add_u32 s60, s58, s59")
    a("s_lshl_b32 s60, s60, 11")
    a(f"s_add_u32 s60, s60, {WS_Q:#x}")
    a("s_lshl_b32 s33, s58, 12")
    a(f"s_add_u32 s33, s33, {WS_KV:#x}")
    a("s_mov_b32 s36, s33")
    a("s_lshl_b32 s41, s28, 11")
    a("s_add_u32 s33, s33, s41")
    a(f"s_add_u32 s41, s41, {KVBASE}")
    a("s_lshl_b32 s61, s59, 16")
    a("s_lshl_b32 s62, s56, 11")
    a("s_add_u32 s61, s61, s62")
    a(f"s_add_u32 s61, s61, {WS_O:#x}")
    a("s_add_u32 s62, s61, 0x10000")
    a("s_waitcnt lgkmcnt(0)")
    srd(a, 4, 50, WS_END)
    def kv_dma(stage):
        vm.issue(("KV", stage)); vm.issue(("KV", stage))
        return [[f"s_add_u32 m0, s41, {(stage % 4) * KSLOT}"],
                ["buffer_load_dwordx4 v2, s[4:7], s33 offen lds"],
                ["buffer_load_dwordx4 v2, s[4:7], s33 offen offset:1024 lds", "s_add_u32 s33, s33, 8192"]]
    def flat(gs):
        r = []
        for i, g in enumerate(gs):
            r += g
            if i == 0: r.append("s_nop 0")
        return r
    for l in flat(kv_dma(0)): a(l)
    for i in range(4):
        vm.issue("Q")
        a(f"buffer_load_dwordx4 {vr(RQ+4*i,4)}, v2, s[4:7], s60 offen offset:{1024*i}")
    for l in flat(kv_dma(1)): a(l)
    a("v_lshrrev_b32 v4, 4, v1")
    a("v_lshrrev_b32 v5, 2, v1")
    a("v_xor_b32 v4, v4, v5")
    a("v_and_b32 v4, 1, v4")
    a("v_cmp_eq_u32 vcc, 0, v4")
    a("v_mov_b32 v5, 0x3f803f80")
    for i in range(4):
        a(f"v_cndmask_b32 v{R1+i}, 0, v5, vcc")
    for r in range(RO, RO + 40): a(f"v_mov_b32 v{r}, 0")
    for r in range(RLV, RLV + 4): a(f"v_mov_b32 v{r}, 0")
    a("v_and_b32 v6, 7, v1")
    a("v_bfe_u32 v7, v1, 3, 1")
    a("v_lshl_add_u32 v6, v7, 4, v6")
    a("v_bfe_u32 v7, v1, 4, 1")
    a("v_lshl_add_u32 v6, v7, 3, v6")
    a("v_lshrrev_b32 v7, 5, v1")
    a("v_lshl_add_u32 v6, v7, 5, v6")
    a("v_lshlrev_b32 v6, 4, v6")

    def rd(kind, t, s):
        base = (RK if kind == "K" else RV) + 8 * (t & 1) + 4 * s
        off = ((t >> 1) % 4) * KSLOT + (t & 1) * 4096 + (0 if kind == "K" else 2048) + s * 1024
        lg.issue((kind, t, s))
        return f"ds_read_b128 {vr(base,4)}, v3 offset:{off}"
    def mS(X, t, s, c0=None):
        D = vr(RS + 16*X, 16)
        C = D if s == 1 else (c0 if c0 is not None else vr(RM + 16*X, 16))
        return ([("K", t, s)], f"v_mfma_f32_32x32x16_bf16 {D}, {vr(RK+8*(t&1)+4*s,4)}, {vr(RQ+8*X+4*s,4)}, {C}")
    def mPV(X, t, s):
        D = vr(RO + 16*X, 16)
        return ([("V", t, s)], f"v_mfma_f32_32x32x16_bf16 {D}, {vr(RV+8*(t&1)+4*s,4)}, {vr(RP+8*X+4*s,4)}, {D}")
    def mL(X, s):
        D = vr(RL + 4*X, 4)
        return ([], f"v_mfma_f32_16x16x32_bf16 {D}, {vr(R1,4)}, {vr(RP+8*X+4*s,4)}, {D}")

    def valu(X):
        S = RS + 16*X; P = RP + 8*X
        e = [(8, f"v_exp_f32 v{S+i}, v{S+i}") for i in range(16)]
        c = [(4, f"v_cvt_pk_bf16_f32 v{P+i}, v{S+2*i}, v{S+2*i+1}") for i in range(8)]
        seq = []
        for i in range(16):
            seq.append(e[i])
            if i >= 2 and i % 2 == 0:
                k = i // 2 - 1
                seq.append(c[k])
                if (k >> 2) >= rs:
                    seq.append((4, f"v_add_f32 v{RLV+2*X}, v{RLV+2*X}, v{S+2*k}"))
                    seq.append((4, f"v_add_f32 v{RLV+2*X+1}, v{RLV+2*X+1}, v{S+2*k+1}"))
        tail = [c[7]]
        if rs < 2:
            tail = [(4, f"v_add_f32 v{RLV+2*X}, v{RLV+2*X}, v{S+14}")] + tail + [(4, f"v_add_f32 v{RLV+2*X+1}, v{RLV+2*X+1}, v{S+15}")]
        else:
            idx = max(i for i, x in enumerate(seq) if x is c[6])
            seq.pop(idx); seq.append(c[6])
        return seq + tail

    NT = 64
    def phase(X, t, do_valu=True):
        Y = 1 - X
        items = []
        ms = []
        ts = t if X == 0 else t + 1
        tp = t - 1 if X == 0 else t
        if ts < NT: ms += [(32, mS(Y, ts, 0)), (32, mS(Y, ts, 1))]
        if tp >= 0:
            for s in range(2):
                ms.append((32, mPV(Y, tp, s)))
                if s < rs: ms.append((16, mL(Y, s)))
        extra = []
        pre = []
        if X == 0 and (t & 1) and t + 1 < NT:
            st = (t + 1) >> 1
            pre = [("wait", "vmcnt", ("KV", st)), ("ins", "s_barrier")]
        if t + 1 < NT:
            kind = "K" if X == 0 else "V"
            extra += [("rd", kind, t + 1, 0), ("rd", kind, t + 1, 1)]
        if X == 0 and not (t & 1):
            st = (t >> 1) + 2
            if st < NT // 2: extra.append(("dma", st))
        va = valu(X) if do_valu else []
        tot = sum(c for c, _ in va); mt = sum(c for c, _ in ms)
        vi = 0; acc = 0; done = 0
        dq = []
        for mi, (mc, (deps, ins)) in enumerate(ms):
            n = lg.need(set(deps)) if deps else None
            items.append(("wait", "lgkmcnt", n))
            items.append(("ins", ins))
            if mi == 0:
                for p in pre:
                    if p[0] == "wait": items.append(("wait", "vmcnt", vm.need({p[2]})))
                    else: items.append(p)
            if dq:
                for l in dq.pop(0): items.append(("ins", l))
            elif extra:
                e = extra.pop(0)
                if e[0] == "rd":
                    items.append(("ins", rd(e[1], e[2], e[3])))
                    if extra and extra[0][0] == "rd" and mi == 0:
                        e = extra.pop(0); items.append(("ins", rd(e[1], e[2], e[3])))
                else:
                    dq = kv_dma(e[1])
                    for l in dq.pop(0): items.append(("ins", l))
            acc += mc
            while vi < len(va) and (done + va[vi][0] / 2 <= tot * acc / mt or mi == len(ms) - 1):
                items.append(("ins", va[vi][1])); done += va[vi][0]; vi += 1
        while dq:
            for l in dq.pop(0): items.append(("ins", l))
        assert not dq and not extra and vi == len(va), (X, t, dq, extra)
        return items

    n = vm.need({("KV", 0), "Q"})
    a(f"s_waitcnt vmcnt({n})")
    a("s_barrier")
    if prof: prof_stamp(a, 1)
    a(rd("K", 0, 0)); a(rd("K", 0, 1)); a(rd("V", 0, 0)); a(rd("V", 0, 1))
    a("s_waitcnt lgkmcnt(0)"); lg.need({("V", 0, 1)})
    for X in range(2):
        for s in range(2): a(mS(X, 0, s, c0="0")[1])
    a("s_nop 7"); a("s_nop 7")
    for X in range(2):
        S = RS + 16*X
        a(f"v_max3_f32 v8, v{S}, v{S+1}, v{S+2}")
        for i in range(3, 15, 2): a(f"v_max3_f32 v8, v8, v{S+i}, v{S+i+1}")
        a(f"v_max_f32 v8, v8, v{S+15}")
        a("v_mov_b32 v9, v8")
        a("s_nop 1")
        a("v_permlane32_swap_b32 v8, v9")
        a("s_nop 1")
        a("v_max_f32 v8, v8, v9")
        for i in range(16): a(f"v_sub_f32 v{RM+16*X+i}, 0, v8")
    a("s_nop 1")
    for s in range(2): a(mS(0, 0, s)[1])
    a("s_nop 7"); a("s_nop 7")
    if o.get("prioA", 0): a(f"s_setprio {o['prioA']}")
    emit_items(a, phase(0, 0)); emit_items(a, phase(1, 0))
    def interval(s):
        return phase(0, 2*s-1) + phase(1, 2*s-1) + phase(0, 2*s) + phase(1, 2*s)
    iters = []
    for it in range(7):
        items = []
        for s in range(1 + 4*it, 5 + 4*it): items += interval(s)
        iters.append(items)
    tail = interval(29) + interval(30) + interval(31) + phase(0, 63) + phase(1, 63)
    iters.append(tail)
    a("s_mov_b32 s29, 7")
    loop_emit(a, iters, 7, "L_att_loop", 29)
    a("s_nop 1")
    emit_items(a, phase(0, 64, do_valu=False))
    if prof: prof_stamp(a, 2)
    a("s_nop 7"); a("s_nop 7")
    for X in range(2):
        L = RL + 4*X
        if rs < 2:
            a(f"v_add_f32 v8, v{RLV+2*X}, v{RLV+2*X+1}")
            a("v_mov_b32 v9, v8")
            a("s_nop 1")
            a("v_permlane32_swap_b32 v8, v9")
            a("s_nop 1")
            a("v_add_f32 v8, v8, v9")
            a(f"v_add_f32 v{L}, v{L}, v8")
    a(f"v_mov_b32 v8, {f32(2.0**40)}")
    a(f"v_cmp_nle_f32 vcc, v{RL}, v8")
    a(f"v_cmp_nle_f32 s[64:65], v{RL+4}, v8")
    a("s_or_b64 vcc, vcc, s[64:65]")
    if o.get("forcefb"): a("s_branch L_att_fb")
    a("s_cbranch_vccnz L_att_fb")
    a.label("L_att_fin")
    for X in range(2):
        L = RL + 4*X; O = RO + 16*X
        a(f"v_rcp_f32 v{L}, v{L}")
        a("s_nop 0")
        for i in range(16): a(f"v_mul_f32 v{O+i}, v{O+i}, v{L}")
        for i in range(8): a(f"v_cvt_pk_bf16_f32 v{RP+8*X+i}, v{O+2*i}, v{O+2*i+1}")
        for s in range(2):
            a(f"buffer_store_dwordx4 {vr(RP+8*X+4*s,4)}, v6, s[4:7], s{61+X} offen offset:{1024*s}")
    if prof:
        prof_stamp(a, 3)
        a("s_waitcnt vmcnt(0)")
        prof_stamp(a, 4); prof_real(a, 1)
        prof_store(a, 5, 4, 27, 2, nwaves=8)
    a("s_endpgm")

    a.label("L_att_fb")
    MX = RM; LS = RM + 2
    for r in range(RO, RO + 32): a(f"v_mov_b32 v{r}, 0")
    for X in range(2):
        a(f"v_mov_b32 v{MX+X}, {f32(-3.0e38)}")
        a(f"v_mov_b32 v{LS+X}, 0")
    a("s_mov_b32 s29, 64")
    a.label("L_att_fbloop")
    for i in range(2):
        a(f"buffer_load_dwordx4 {vr(RK+4*i,4)}, v2, s[4:7], s36 offen offset:{1024*i}")
    for i in range(2):
        a(f"buffer_load_dwordx4 {vr(RV+4*i,4)}, v2, s[4:7], s36 offen offset:{2048+1024*i}")
    a("s_add_u32 s36, s36, 4096")
    a("s_waitcnt vmcnt(0)")
    for X in range(2):
        for s in range(2): a(mS(X, 0, s, c0="0")[1])
    a("s_nop 7"); a("s_nop 7")
    for X in range(2):
        S = RS + 16*X; O = RO + 16*X; P = RP + 8*X
        a(f"v_max3_f32 v8, v{S}, v{S+1}, v{MX+X}")
        for i in range(2, 16, 2): a(f"v_max3_f32 v8, v8, v{S+i}, v{S+i+1}")
        a("v_mov_b32 v9, v8")
        a("s_nop 1")
        a("v_permlane32_swap_b32 v8, v9")
        a("s_nop 1")
        a("v_max_f32 v8, v8, v9")
        a(f"v_sub_f32 v9, v{MX+X}, v8")
        a("v_exp_f32 v9, v9")
        a(f"v_mov_b32 v{MX+X}, v8")
        for i in range(16): a(f"v_sub_f32 v{S+i}, v{S+i}, v8")
        for i in range(16): a(f"v_exp_f32 v{S+i}, v{S+i}")
        a(f"v_mul_f32 v{LS+X}, v{LS+X}, v9")
        for i in range(16): a(f"v_mul_f32 v{O+i}, v{O+i}, v9")
        for i in range(16): a(f"v_add_f32 v{LS+X}, v{LS+X}, v{S+i}")
        for i in range(8): a(f"v_cvt_pk_bf16_f32 v{P+i}, v{S+2*i}, v{S+2*i+1}")
        a("s_nop 1")
        for s in range(2): a(mPV(X, 0, s)[1])
    a("s_nop 7"); a("s_nop 7")
    a("s_sub_u32 s29, s29, 1")
    a("s_cmp_lg_u32 s29, 0")
    a("s_cbranch_scc1 L_att_fbloop")
    for X in range(2):
        a(f"v_mov_b32 v9, v{LS+X}")
        a("s_nop 1")
        a(f"v_permlane32_swap_b32 v{LS+X}, v9")
        a("s_nop 1")
        a(f"v_add_f32 v{RL+4*X}, v{LS+X}, v9")
    a("s_branch L_att_fin")

def w_lane_setup(a, vdst, tmp):
    a(f"v_lshrrev_b32 v{tmp}, 3, v1")
    a(f"v_and_b32 v{tmp+1}, 2, v{tmp}")
    a(f"v_and_b32 v{tmp+2}, 7, v1")
    a(f"v_xor_b32 v{tmp+1}, v{tmp+1}, v{tmp+2}")
    a(f"v_lshlrev_b32 v{tmp+1}, 4, v{tmp+1}")
    a(f"v_lshl_add_u32 v{vdst}, v{tmp}, 11, v{tmp+1}")
def w_read_setup(a, vdst, tmp):
    a(f"v_lshrrev_b32 v{tmp}, 5, v1")
    a(f"v_bfe_u32 v{tmp+1}, v1, 2, 2")
    a(f"v_lshl_add_u32 v{tmp}, v{tmp}, 2, v{tmp+1}")
    a(f"v_and_b32 v{tmp+1}, 2, v{tmp}")
    a(f"v_and_b32 v{tmp+2}, 1, v1")
    a(f"v_lshl_add_u32 v{tmp+1}, v{tmp+2}, 2, v{tmp+1}")
    a(f"v_bfe_u32 v{tmp+2}, v1, 4, 1")
    a(f"v_add_u32 v{tmp+1}, v{tmp+1}, v{tmp+2}")
    a(f"v_lshlrev_b32 v{tmp}, 7, v{tmp}")
    a(f"v_lshl_add_u32 v{tmp}, v{tmp+1}, 4, v{tmp}")
    a(f"v_bfe_u32 v{tmp+2}, v1, 1, 1")
    a(f"v_lshl_add_u32 v{vdst}, v{tmp+2}, 3, v{tmp}")

GACC = 32; GF = 96
def down_body(a, o):
    prof = o.get("prof", False)
    vm = Counter(63); lg = Counter(15)
    a("s_and_b32 s56, s2, 1")
    a("s_bfe_u32 s57, s2, 0x20001")
    a("s_lshl_b32 s57, s57, 2")
    a("s_bfe_u32 s58, s2, 0x20003")
    a("s_add_u32 s57, s57, s58")
    a("s_lshr_b32 s58, s2, 5")
    a("v_lshlrev_b32 v2, 4, v1")
    a("s_mul_i32 s34, s57, 112")
    a("s_mul_i32 s59, s56, 56")
    a("s_add_u32 s34, s34, s59")
    a("s_lshl_b32 s34, s34, 13")
    a("s_lshl_b32 s41, s28, 12")
    a("s_add_u32 s34, s34, s41")
    a(f"s_add_u32 s34, s34, {WS_H:#x}")
    a(f"s_mul_i32 s33, s56, {1792*2048}")
    a("s_lshl_b32 s59, s58, 8")
    a("s_add_u32 s33, s33, s59")
    a("s_lshl_b32 s59, s28, 15")
    a("s_add_u32 s33, s33, s59")
    a("s_lshl_b32 s42, s28, 11")
    w_lane_setup(a, 4, 20)
    a("v_add_u32 v5, 16384, v4")
    w_read_setup(a, 8, 20)
    a("s_and_b32 s59, s28, 1")
    a("s_lshl_b32 s59, s59, 13")
    a("s_add_u32 s59, s59, 16384")
    a("v_add_u32 v8, s59, v8")
    a("v_xor_b32 v9, 32, v8")
    a(f"v_add_u32 v10, {2*GSLOT}, v8")
    a(f"v_add_u32 v11, {2*GSLOT}, v9")
    a("v_and_b32 v12, 15, v1")
    a("v_lshlrev_b32 v12, 4, v12")
    a("v_bfe_u32 v20, v1, 4, 1")
    a("v_lshl_add_u32 v12, v20, 10, v12")
    a("v_lshrrev_b32 v20, 5, v1")
    a("v_lshl_add_u32 v12, v20, 8, v12")
    a("s_lshr_b32 s59, s28, 1")
    a("s_lshl_b32 s59, s59, 12")
    a("v_add_u32 v12, s59, v12")
    a(f"v_add_u32 v13, {2*GSLOT}, v12")
    a("s_lshl_b32 s60, s56, 4")
    a("s_add_u32 s60, s60, s57")
    a("s_lshl_b32 s60, s60, 3")
    a("s_add_u32 s60, s60, s58")
    a("s_lshl_b32 s60, s60, 1")
    a("s_and_b32 s59, s28, 1")
    a("s_add_u32 s60, s60, s59")
    a("s_lshl_b32 s60, s60, 2")
    a("s_and_b32 s59, s28, 2")
    a("s_add_u32 s60, s60, s59")
    a("s_lshl_b32 s60, s60, 13")
    a(f"s_add_u32 s60, s60, {WS_XB:#x}")
    a("s_waitcnt lgkmcnt(0)")
    srd(a, 4, 50, WS_END)
    srd(a, 8, 48, 3584 * 2048)
    def dma(stage):
        slot = (stage % 4) * GSLOT
        gs = []
        for q in range(4):
            g = []
            if q == 0: g.append(f"s_add_u32 m0, s41, {slot}"); gs.append(g); g = []
            vm.issue(("G", stage))
            g.append(f"buffer_load_dwordx4 v2, s[4:7], s34 offen offset:{1024*q} lds")
            if q == 3: g.append("s_add_u32 s34, s34, 16384")
            gs.append(g)
        for q in range(4):
            kq, wn = q >> 1, q & 1
            gs[-1].append(f"s_add_u32 m0, s42, {slot + 16384 + wn*8192 + kq*1024 - wn*128}")
            vm.issue(("G", stage))
            g = [f"buffer_load_dwordx4 v{4+kq}, s[8:11], s33 offen offset:{128*wn} lds"]
            if q == 3: g.append(f"s_add_u32 s33, s33, {64*2048}")
            gs.append(g)
        return gs
    NS = 28; D = o.get("gD", 3)
    for st in range(D):
        for g in dma(st):
            for l in g: a(l)
            a("s_nop 0")
    for r in range(GACC, GACC + 64): a(f"v_mov_b32 v{r}, 0")
    def hreg(st, k, tb): return GF + 64*(st & 1) + 16*k + 4*tb
    def wreg(st, k, nb): return GF + 64*(st & 1) + 16*k + 8 + 4*nb
    def reads(st):
        slot = st % 4
        so = (slot & 1) * GSLOT; hb = slot >> 1
        r = []
        for k in range(4):
            ks2, s = k >> 1, k & 1
            for tb in range(2):
                r.append(f"ds_read_b128 {vr(hreg(st,k,tb),4)}, v{12+hb} offset:{so + ks2*8192 + tb*2048 + s*512}")
            for nb in range(2):
                for rd in range(2):
                    kg = 4*ks2 + 2*rd + s
                    r.append(f"ds_read_b64_tr_b16 {vr(wreg(st,k,nb)+2*rd,2)}, v{8+nb+2*hb} offset:{so + kg*1024}")
        return r
    def interval(s):
        items = []
        if s < NS:
            items.append(("wait", "vmcnt", vm.need({("G", s)})))
        items.append(("ins", "s_waitcnt lgkmcnt(0)"))
        items.append(("ins", "s_barrier"))
        rq = reads(s) if s < NS else []
        dq = dma(s + D) if s + D < NS else []
        ms = []
        if s >= 1:
            for k in range(4):
                for (tb, nb) in ((0,0),(0,1),(1,1),(1,0)):
                    c = vr(GACC + 16*(2*tb+nb), 16)
                    ms.append(f"v_mfma_f32_32x32x16_bf16 {c}, {vr(wreg(s-1,k,nb),4)}, {vr(hreg(s-1,k,tb),4)}, {c}")
        else:
            ms = ["s_nop 0"] * 16
        for m in ms:
            items.append(("ins", m))
            for _ in range(2):
                if rq: items.append(("ins", rq.pop(0)))
            if dq:
                for l in dq.pop(0): items.append(("ins", l))
        assert not rq and not dq
        return items
    if o.get("prioG", 0): a(f"s_setprio {o['prioG']}")
    emit_items(a, interval(0))
    if prof: prof_stamp(a, 1)
    iters = []
    for it in range(6):
        items = []
        for s in range(1 + 4*it, 5 + 4*it): items += interval(s)
        iters.append(items)
    iters.append(interval(25) + interval(26) + interval(27) + interval(28))
    a("s_mov_b32 s29, 6")
    loop_emit(a, iters, 6, "L_dn_loop", 29)
    if prof: prof_stamp(a, 2)
    a("s_nop 7"); a("s_nop 7")
    sc = " sc1" if o.get("xbsc1") else ""
    for tb in range(2):
        for nb in range(2):
            for q in range(4):
                a(f"buffer_store_dwordx4 {vr(GACC+16*(2*tb+nb)+4*q,4)}, v2, s[4:7], s60 offen offset:{1024*q}{sc}")
            a("s_add_u32 s60, s60, 4096")
    if prof:
        prof_stamp(a, 3)
        a("s_waitcnt vmcnt(0)")
        prof_stamp(a, 4); prof_real(a, 1)
        prof_store(a, 5, 4, 27, 2, nwaves=8)
    a("s_endpgm")

def gen_s3(a, name, o):
    kernel_begin(a, name)
    a("s_cmp_ge_u32 s2, 256")
    a("s_cbranch_scc1 L_s3_end")
    if o.get("prof"): prof_stamp(a, 0); prof_real(a, 0)
    a("s_load_dwordx2 s[48:49], s[0:1], 48")
    a("s_load_dwordx2 s[50:51], s[0:1], 72")
    a("v_lshrrev_b32 v15, 6, v0")
    a("v_and_b32 v1, 63, v0")
    a("v_readfirstlane_b32 s27, v15")
    a("s_and_b32 s28, s27, 3")
    a("s_cmp_ge_u32 s27, 4")
    a("s_cbranch_scc1 L_s3_down")
    a("s_and_b32 s56, s2, 7")
    a("s_lshl_b32 s56, s56, 2")
    a("s_bfe_u32 s57, s2, 0x20003")
    a("s_add_u32 s56, s56, s57")
    a("s_lshr_b32 s57, s2, 5")
    if o.get("noatt"): a("s_endpgm")
    att_body(a, o)
    a.label("L_s3_down")
    if o.get("nodown"): a("s_endpgm")
    down_body(a, o)
    a.label("L_s3_end")
    a("s_endpgm")
    return dict(name=name, grid=256, block=512, lds=S3_LDS, vgpr=256, accum=256)

def gen_wo(a, name, o):
    prof = o.get("prof", False)
    kernel_begin(a, name)
    a("s_cmp_ge_u32 s2, 256")
    a("s_cbranch_scc1 L_wo_end")
    if prof: prof_stamp(a, 0); prof_real(a, 0)
    a("s_load_dwordx2 s[48:49], s[0:1], 16")
    a("s_load_dwordx2 s[50:51], s[0:1], 72")
    a("s_load_dwordx2 s[52:53], s[0:1], 0")
    a("s_load_dwordx2 s[54:55], s[0:1], 56")
    a("v_lshrrev_b32 v15, 6, v0")
    a("v_and_b32 v1, 63, v0")
    a("v_readfirstlane_b32 s28, v15")
    a("s_bfe_u32 s57, s2, 0x20001")
    a("s_lshl_b32 s57, s57, 2")
    a("s_bfe_u32 s58, s2, 0x20003")
    a("s_add_u32 s57, s57, s58")
    a("s_and_b32 s58, s2, 1")
    a("s_lshl_b32 s58, s58, 3")
    a("s_lshr_b32 s59, s2, 5")
    a("s_add_u32 s58, s58, s59")
    a("v_lshlrev_b32 v2, 4, v1")
    a("s_lshl_b32 s56, s57, 2")
    a("s_add_u32 s56, s56, s28")
    a("s_lshl_b32 s34, s56, 16")
    a(f"s_add_u32 s34, s34, {WS_O:#x}")
    a("s_lshl_b32 s33, s58, 7")
    a("s_lshl_b32 s59, s28, 16")
    a("s_add_u32 s33, s33, s59")
    a("s_lshl_b32 s42, s28, 12")
    w_lane_setup(a, 4, 20)
    for q in range(1, 4): a(f"v_add_u32 v{4+q}, {16384*q - 1024*q}, v4")
    w_read_setup(a, 8, 20)
    a("v_xor_b32 v9, 32, v8")
    a("v_add_u32 v10, 0x10000, v8")
    a("v_add_u32 v11, 0x10000, v9")
    a("s_lshl_b32 s60, s57, 4")
    a("s_add_u32 s60, s60, s58")
    a("s_lshl_b32 s60, s60, 2")
    a("s_add_u32 s60, s60, s28")
    a("s_lshl_b32 s60, s60, 13")
    a(f"s_add_u32 s60, s60, {WS_XB:#x}")
    for i in range(1, 4): a(f"s_add_u32 s{60+i}, s60, {(i&1)*4096 + (i>>1)*0x800000:#x}")
    a("v_and_b32 v3, 31, v1")
    a("v_lshlrev_b32 v3, 11, v3")
    a("v_lshrrev_b32 v20, 5, v1")
    a("v_lshl_add_u32 v3, v20, 6, v3")
    a("s_lshl_b32 s64, s56, 16")
    a("s_lshl_b32 s59, s58, 7")
    a("s_add_u32 s64, s64, s59")
    a("s_waitcnt lgkmcnt(0)")
    srd(a, 4, 50, WS_END)
    srd(a, 8, 48, 1024 * 2048)
    srd(a, 12, 52, 2048 * 2048)
    srd(a, 16, 54, 2048 * 2048)
    vm = Counter(63); lg = Counter(15)
    ACC = 32; XB = 64; XR = 128; WF = 144
    def loads(c):
        gs = [[f"s_add_u32 m0, s42, {c*16384}"]]
        for q in range(4):
            vm.issue(("W", c))
            gs.append([f"buffer_load_dwordx4 v{4+q}, s[8:11], s33 offen offset:{1024*q} lds"])
        gs[-1].append(f"s_add_u32 s33, s33, {128*2048}")
        for q in range(8):
            vm.issue(("O", c))
            gs.append([f"buffer_load_dwordx4 {ar(32*c+4*q,4)}, v2, s[4:7], s34 offen offset:{1024*(q&3)}"])
            if q & 3 == 3: gs[-1].append("s_add_u32 s34, s34, 4096")
        return gs
    def xloads():
        gs = []
        for i in range(4):
            for q in range(4):
                vm.issue("X")
                gs.append([f"buffer_load_dwordx4 {vr(XB+16*i+4*q,4)}, v2, s[4:7], s{60+i} offen offset:{1024*q}"])
        for q in range(4):
            vm.issue("X")
            gs.append([f"buffer_load_dwordx4 {vr(XR+4*q,4)}, v3, s[12:15], s64 offen offset:{16*q}"])
        return gs
    PRE = o.get("wo_pre", 5)
    for c in range(PRE):
        for i, g in enumerate(loads(c)):
            for l in g: a(l)
            if i == 0: a("s_nop 0")
    for r in range(ACC, ACC + 32): a(f"v_mov_b32 v{r}, 0")
    later = {}
    sched = ["X"] + list(range(PRE, 8))
    def wrd(step, nb, rd):
        kg = 2*step + rd
        lg.issue(("A", step, nb))
        return f"ds_read_b64_tr_b16 {vr(WF+8*(step&3)+4*nb+2*rd,2)}, v{8+nb+2*(kg>>6)} offset:{(kg&63)*1024}"
    LA = 3
    a(f"s_waitcnt vmcnt({vm.need({('W',0)})})")
    a("s_barrier")
    if prof: prof_stamp(a, 1)
    for st in range(LA):
        for nb in range(2):
            for rd in range(2): a(wrd(st, nb, rd))
    dq = []
    for st in range(64):
        c = st >> 3
        if st & 7 == 0:
            n = vm.need({("O", c)})
            if n is not None: a(f"s_waitcnt vmcnt({n})")
            assert not dq
            if sched:
                e = sched.pop(0)
                dq = xloads() if e == "X" else loads(e)
        nx = st + LA
        if nx < 64 and nx & 7 == 0:
            assert not dq
            n = vm.need({("W", nx >> 3)})
            if n is not None: a(f"s_waitcnt vmcnt({n})")
            a("s_barrier")
        for nb in range(2):
            n = lg.need({("A", st, nb)})
            if n is not None: a(f"s_waitcnt lgkmcnt({n})")
            cc = vr(ACC + 16*nb, 16)
            a(f"v_mfma_f32_32x32x16_bf16 {cc}, {vr(WF+8*(st&3)+4*nb,4)}, {ar(4*st,4)}, {cc}")
            if nx < 64:
                for rd in range(2): a(wrd(nx, nb, rd))
            for _ in range(2):
                if dq:
                    g = dq.pop(0)
                    for l in g: a(l)
                    if g[-1].startswith("s_add_u32 m0"): a("s_nop 0")
    if prof: prof_stamp(a, 2)
    n = vm.need({"X"})
    if n is not None: a(f"s_waitcnt vmcnt({n})")
    a("s_mov_b32 s66, 0xffff0000")
    for nb in range(2):
        for j in range(16):
            a(f"v_add_f32 v{XB+16*nb+j}, v{XB+16*nb+j}, v{XB+32+16*nb+j}")
    for nb in range(2):
        for j in range(0, 16, 2):
            xr = XR + 8*nb + j // 2
            a(f"v_lshlrev_b32 v20, 16, v{xr}")
            a(f"v_and_b32 v21, s66, v{xr}")
            a(f"v_add_f32 v{XB+16*nb+j}, v{XB+16*nb+j}, v20")
            a(f"v_add_f32 v{XB+16*nb+j+1}, v{XB+16*nb+j+1}, v21")
    for nb in range(2):
        for j in range(16):
            a(f"v_add_f32 v{XB+16*nb+j}, v{XB+16*nb+j}, v{ACC+16*nb+j}")
        for j in range(8):
            a(f"v_cvt_pk_bf16_f32 v{XR+8*nb+j}, v{XB+16*nb+2*j}, v{XB+16*nb+2*j+1}")
        for q in range(2):
            a(f"buffer_store_dwordx4 {vr(XR+8*nb+4*q,4)}, v3, s[16:19], s64 offen offset:{32*nb+16*q}")
    if prof:
        prof_stamp(a, 3)
        a("s_waitcnt vmcnt(0)")
        prof_stamp(a, 4); prof_real(a, 1)
        prof_store(a, 5, 4, 28, 3)
    a.label("L_wo_end")
    a("s_endpgm")
    return dict(name=name, grid=256, block=256, lds=131072, vgpr=512, accum=256)

def gen_stage3(a, opts):
    return [gen_s3(a, "s3_kernel", opts.get("s3", {})), gen_wo(a, "wo_kernel", opts.get("wo", {}))]
```

```python
NAME = "parallel_sum__softmax_full_mha__glu_gated_glu__prompt"
WS_XN = 0x0000000
WS_Q  = 0x0400000
WS_KV = 0x0800000
WS_H  = 0x1000000
WS_O  = 0x2000000
WS_XB = 0x2400000
WS_FLAG = 0x3500000
WS_HINT = 0x0100000
WS_END = 0x3700000

class Asm:
    def __init__(self):
        self.lines = []
    def __call__(self, s):
        for l in s.split("\n"):
            l = l.strip()
            if not l:
                continue
            if l.endswith(":") or l.startswith("."):
                self.lines.append(l)
            else:
                self.lines.append("    " + l)
    def label(self, l):
        self.lines.append(l + ":")
    def text(self):
        return "\n".join(self.lines) + "\n"

def vr(base, n=1, p="v"):
    return f"{p}{base}" if n == 1 else f"{p}[{base}:{base+n-1}]"
def ar(base, n=1):
    return vr(base, n, "a")
def sr(base, n=1):
    return vr(base, n, "s")

def kernel_begin(a, name):
    a(f".globl {name}")
    a(".p2align 8")
    a(f".type {name},@function")
    a.label(name)

def kernel_desc(name, vgpr, accum, sgpr=102):
    return f""".p2align 6
.amdhsa_kernel {name}
  .amdhsa_next_free_vgpr {vgpr}
  .amdhsa_next_free_sgpr {sgpr}
  .amdhsa_accum_offset {accum}
  .amdhsa_group_segment_fixed_size 0
  .amdhsa_kernarg_size 80
  .amdhsa_user_sgpr_count 2
  .amdhsa_user_sgpr_kernarg_segment_ptr 1
  .amdhsa_system_sgpr_workgroup_id_x 1
.end_amdhsa_kernel
"""

def srd(a, d, base, nbytes):
    a(f"s_mov_b32 s{d}, s{base}")
    a(f"s_mov_b32 s{d+1}, s{base+1}")
    a(f"s_mov_b32 s{d+2}, {nbytes:#x}")
    a(f"s_mov_b32 s{d+3}, 0x00020000")

import struct
def f32(x):
    return "0x%08x" % struct.unpack("<I", struct.pack("<f", x))[0]

class Counter:
    def __init__(self, maxn):
        self.q = []
        self.done = 0
        self.maxn = maxn
    def issue(self, tag):
        self.q.append(tag)
    def need(self, tags, cap=None):
        idx = -1
        for i in range(len(self.q) - 1, -1, -1):
            if self.q[i] in tags:
                idx = i
                break
        if idx < 0 or idx < self.done:
            return None
        n = len(self.q) - 1 - idx
        lim = self.maxn if cap is None else min(cap, self.maxn)
        n = min(n, lim)
        self.done = len(self.q) - n
        return n

WS_PROF = 0x3400000
PROF = False
def prof_stamp(a, idx):
    a(f"s_memtime s[{80+2*idx}:{81+2*idx}]")
def prof_real(a, which):
    a(f"s_memrealtime s[{92+2*which}:{93+2*which}]")
def prof_store(a, n, srd_, wavereg, kidx, nwaves=4, tmp=0):
    a("s_waitcnt lgkmcnt(0)")
    a(f"s_mul_i32 s96, s2, {nwaves}")
    a(f"s_add_u32 s96, s96, s{wavereg}")
    a(f"s_lshl_b32 s96, s96, 6")
    a(f"s_add_u32 s96, s96, {WS_PROF + kidx*0x40000:#x}")
    a(f"v_mov_b32 v{tmp}, 0")
    for i in range(n):
        a(f"s_sub_u32 s97, s{80+2*i}, s80")
        a(f"v_mov_b32 v{tmp+1}, s97")
        a(f"buffer_store_dword v{tmp+1}, v{tmp}, s[{srd_}:{srd_+3}], s96 offen offset:{4*i}")
    a(f"s_sub_u32 s97, s94, s92")
    a(f"v_mov_b32 v{tmp+1}, s97")
    a(f"buffer_store_dword v{tmp+1}, v{tmp}, s[{srd_}:{srd_+3}], s96 offen offset:32")
    a(f"v_mov_b32 v{tmp+1}, s92")
    a(f"buffer_store_dword v{tmp+1}, v{tmp}, s[{srd_}:{srd_+3}], s96 offen offset:36")
    a(f"s_getreg_b32 s97, hwreg(HW_REG_HW_ID)")
    a(f"v_mov_b32 v{tmp+1}, s97")
    a(f"buffer_store_dword v{tmp+1}, v{tmp}, s[{srd_}:{srd_+3}], s96 offen offset:40")
    a(f"s_getreg_b32 s97, hwreg(HW_REG_XCC_ID)")
    a(f"v_mov_b32 v{tmp+1}, s97")
    a(f"buffer_store_dword v{tmp+1}, v{tmp}, s[{srd_}:{srd_+3}], s96 offen offset:44")
```

```python
from gen_common import *

SLOT = 20480
XBASE = 4 * SLOT
CBASE = XBASE + 65536
G1_LDS = CBASE + 1280 + 2048
WS_ST = 0
WS_CS = 0x10000
ONES = 28; ST = 20; CSA = 208; CSP = 228
LOG2E = 1.4426950408889634

def loop_emit(a, iters, nloop, label, cnt, extra=None):
    ref = iters[0]
    for it in range(1, nloop):
        assert len(iters[it]) == len(ref), (it, len(iters[it]), len(ref))
        for x, y in zip(iters[it], ref):
            assert x[0] == y[0] and (x[0] == "wait" or x[1] == y[1]), (it, x, y)
    a.label(label)
    for idx, x in enumerate(ref):
        if x[0] == "ins":
            a(x[1])
        else:
            ns = [iters[it][idx][2] for it in range(nloop) if iters[it][idx][2] is not None]
            if ns:
                a(f"s_waitcnt {x[1]}({min(ns)})")
    if extra: extra()
    a(f"s_sub_u32 s{cnt}, s{cnt}, 1")
    a(f"s_cmp_lg_u32 s{cnt}, 0")
    a(f"s_cbranch_scc1 {label}")
    for it in range(nloop, len(iters)):
        for x in iters[it]:
            if x[0] == "ins": a(x[1])
            elif x[2] is not None: a(f"s_waitcnt {x[1]}({x[2]})")

def gen_g1(a, name, D=2, lg_cap=8, bar_pos=4, prof=False, hack='', nslot=6, sc=' sc1', fv=1):
    kernel_begin(a, name)
    a("s_cmp_ge_u32 s2, 256")
    a("s_cbranch_scc1 L_g1_end")
    if prof: prof_stamp(a, 0); prof_real(a, 0)
    a("s_load_dwordx2 s[48:49], s[0:1], 8")
    a("s_load_dwordx4 s[52:55], s[0:1], 32")
    a("s_load_dwordx4 s[60:63], s[0:1], 64")
    a("s_load_dwordx2 s[50:51], s[0:1], 0")
    a("v_lshrrev_b32 v15, 6, v0")
    a("v_and_b32 v1, 63, v0")
    a("v_readfirstlane_b32 s28, v15")
    a("s_and_b32 s56, s2, 31")
    a("s_lshr_b32 s57, s2, 5")
    a("v_lshrrev_b32 v15, 3, v1")
    a("v_and_b32 v16, 7, v1")
    a("v_lshrrev_b32 v17, 1, v15")
    a("v_xor_b32 v18, v16, v17")
    a("v_lshlrev_b32 v18, 4, v18")
    a("v_lshl_add_u32 v2, v15, 11, v18")
    a("v_xor_b32 v3, 64, v2")
    a("v_lshlrev_b32 v17, 1, v17")
    a("v_xor_b32 v18, v16, v17")
    a("v_lshlrev_b32 v18, 4, v18")
    a("v_lshrrev_b32 v19, 2, v15")
    a("v_and_b32 v20, 3, v15")
    a("v_lshl_add_u32 v19, v19, 3, v20")
    a("s_lshr_b32 s58, s28, 1")
    a("s_lshl_b32 s58, s58, 4")
    a("s_and_b32 s59, s28, 1")
    a("s_lshl_b32 s59, s59, 2")
    a("s_add_u32 s58, s58, s59")
    a("v_add_u32 v19, s58, v19")
    a("v_mul_u32_u24 v20, 6144, v19")
    a("v_add_u32 v20, v20, v18")
    a("s_lshl_b32 s58, s56, 7")
    a("v_add_u32 v4, s58, v20")
    a("v_mul_u32_u24 v21, 7168, v19")
    a("v_add_u32 v21, v21, v18")
    a("s_lshl_b32 s58, s56, 8")
    a("v_add_u32 v5, s58, v21")
    a("s_lshl_b32 s58, s56, 9")
    a(f"s_sub_u32 s58, s58, {28*512-4096}")
    a("v_add_u32 v6, s58, v20")
    a("v_lshrrev_b32 v18, 5, v1")
    a("v_bfe_u32 v19, v1, 2, 3")
    a("v_and_b32 v20, 3, v1")
    a("v_lshlrev_b32 v21, 11, v18")
    a("v_lshl_add_u32 v21, v19, 7, v21")
    a("v_lshl_add_u32 v21, v20, 3, v21")
    a("v_lshrrev_b32 v19, 1, v19")
    for c in range(4):
        a(f"v_xor_b32 v20, {c}, v19")
        a(f"v_lshl_add_u32 v{8+c}, v20, 5, v21")
        a(f"v_add_u32 v{12+c}, {2*SLOT}, v{8+c}")
    a("s_lshl_b32 s42, s28, 14")
    a(f"s_add_u32 s42, s42, {XBASE}")
    a("v_and_b32 v20, 15, v1")
    a("v_lshrrev_b32 v21, 1, v20")
    a("v_lshrrev_b32 v18, 4, v1")
    a("v_xor_b32 v21, v21, v18")
    a("v_lshlrev_b32 v20, 7, v20")
    a("v_add_u32 v20, s42, v20")
    a("v_lshl_add_u32 v16, v21, 4, v20")
    a("v_xor_b32 v17, 64, v16")
    a("s_mov_b32 s30, 0")
    a("s_mov_b32 s33, 0")
    a("s_lshl_b32 s41, s28, 10")
    a("s_lshl_b32 s34, s57, 19")
    a("s_lshl_b32 s58, s28, 17")
    a("s_add_u32 s34, s34, s58")
    a("s_lshl_b32 s58, s2, 3")
    a("s_lshl_b32 s59, s28, 1")
    a("s_add_u32 s58, s58, s59")
    a("s_lshl_b32 s79, s58, 3")
    a("s_lshl_b32 s58, s58, 11")
    a("v_and_b32 v20, 31, v1")
    a("v_lshrrev_b32 v21, 5, v1")
    a("v_lshlrev_b32 v20, 4, v20")
    a("v_lshl_add_u32 v20, v21, 11, v20")
    a("s_waitcnt lgkmcnt(0)")
    srd(a, 20, 50, 2048 * 2048)
    for q in range(4):
        a(f"buffer_load_dwordx4 v[{32+4*q}:{35+4*q}], v20, s[20:23], s58 offen offset:{512*q}")
    srd(a, 4, 62, WS_END)
    srd(a, 24, 60, 256)
    srd(a, 8, 48, 1024 * 6144)
    srd(a, 12, 52, 1024 * 7168)
    srd(a, 16, 54, 1024 * 7168)
    a(f"s_lshl_b32 s58, s2, {(8, 9, 13)[fv]}")
    a(f"s_add_u32 s58, s58, {WS_FLAG:#x}")
    a("v_mov_b32 v20, 0")
    a(f"v_lshlrev_b32 v21, {(2, 3, 7)[fv]}, v1")
    a("buffer_store_dword v20, v21, s[4:7], s58 offen")
    a("s_cmp_ge_u32 s56, 28")
    a("s_cbranch_scc1 L_g1_T2")
    body(a, 1, D, lg_cap, bar_pos, prof, hack, nslot, sc)
    a.label("L_g1_T2")
    body(a, 2, D, lg_cap, bar_pos, prof, hack, nslot, sc)
    a.label("L_g1_end")
    a("s_endpgm")
    return dict(name=name, grid=256, block=256, lds=G1_LDS, vgpr=256+240, accum=256)

AF = 96; BF = 176
def accreg(nb, tb):
    L, c = nb >> 2, nb & 3
    if L == 0:
        return ("a", (((c >> 1) * 4 + tb) * 2 + (c & 1)) * 4)
    e = ((L - 1) * 4 + c) >> 1
    idx = ((e * 4 + tb) * 2 + (c & 1)) * 4
    if idx < 224: return ("v", 32 + idx)
    return ("a", 64 + idx - 224)

def body(a, typ, D, lg_cap, bar_pos, prof, hack, nslot, sc):
    vm = Counter(63)
    lg = Counter(15)
    def w_dma(stage, n):
        slot = stage % 4
        if n == 0: voff, sr_, so, off = 4, 8, 33, 0
        elif typ == 1: voff, sr_, so, off = 5, (12 if n < 3 else 16), 30, ((n - 1) & 1) * 128
        else: voff, sr_, so, off = 6, 8, 33, (n - 1) * 128
        o = f" offset:{off}" if off else ""
        vm.issue(("W", stage))
        g1 = [f"s_add_u32 m0, s41, {slot*SLOT + n*4096 - off}"]
        g2 = [f"buffer_load_dwordx4 v{voff}, s[{sr_}:{sr_+3}], s{so} offen{o} lds"]
        if n == 4:
            g2.append(f"s_add_u32 s33, s33, {32*6144}")
            if typ == 1: g2.append(f"s_add_u32 s30, s30, {32*7168}")
        return [g1, g2]
    def x_dma(tile, n):
        slot = tile % 2
        vm.issue(("X", tile))
        g1 = [f"s_add_u32 m0, s42, {slot*8192 + n*1024}", f"s_add_u32 s35, s34, {n*16384}"]
        g2 = [f"buffer_load_dwordx4 v{2+(n&1)}, s[20:23], s35 offen lds"]
        if n == 7: g2.append("s_add_u32 s34, s34, 128")
        return [g1, g2]
    def a_read(step, nb, rd):
        slot = step % 4
        L, c = nb >> 2, nb & 3
        lg.issue(("A", step, nb))
        return f"ds_read_b64_tr_b16 {ar(AF+4*nb+2*rd, 2)}, v{8 + c + 4*(slot>>1)} offset:{(slot&1)*SLOT + L*4096 + rd*1024}"
    def b_read(step, tb):
        tile = step >> 1
        lg.issue(("B", step, tb))
        return f"ds_read_b128 {ar(BF+16*(step&1)+4*tb, 4)}, v{16+(step&1)} offset:{(tile&1)*8192 + tb*2048}"

    NS = 32
    sched = {i: [] for i in range(-8, NS)}
    for s in range(-4, NS):
        st = s + D
        if 0 <= st < NS:
            for n in range(5):
                sched[s-1].append(("W", st, n))
    for t in range(-3, 16):
        tl = t + 2
        if 0 <= tl < 16:
            for n in range(8):
                sched[2*t+1 + (0 if n < 5 else 1)].append(("X", tl, n))
    pro = [e for i in range(-8, 0) for e in sched[i]]
    pro.sort(key=lambda e: (e[1] if e[0] == "W" else e[1]*2 - 0.5, e[2]))
    for q in range(4): vm.issue("SR")
    vm.issue("FL")
    for e in pro:
        g1, g2 = (w_dma if e[0] == "W" else x_dma)(e[1], e[2])
        for l in g1: a(l)
        if len(g1) == 1: a("s_nop 0")
        for l in g2: a(l)
    for r in range(80, 256):
        a(f"v_mov_b32 v{r}, 0")
    for r in list(range(96)) + list(range(CSA, CSA + 20)):
        a(f"v_accvgpr_write_b32 a{r}, 0")
    for r in range(4): a(f"v_mov_b32 v{ONES+r}, 0x3f803f80")
    a("v_mov_b32 v7, 1")
    a("v_mov_b32 v19, 1.0")
    a("s_sub_u32 s75, 7, s57")
    a("s_sub_u32 s76, 6, s57")
    a(f"s_cmp_ge_u32 s57, {nslot}")
    a("s_cselect_b32 s75, -1, s75")
    a("s_cselect_b32 s76, 7, s76")
    a("s_cmp_lg_u32 s28, 0")
    a("s_cselect_b32 s76, -1, s76")
    a("s_cmp_eq_u32 s75, 7")
    a("s_cselect_b32 s74, 1, 0")
    a("s_lshl_b32 s78, s56, 3")
    a("s_add_u32 s78, s78, s57")
    a("s_mul_i32 s78, s78, 1280")
    a("s_mul_i32 s77, s28, 320")
    a("s_add_u32 s78, s78, s77")
    a(f"s_add_u32 s78, s78, {WS_CS:#x}")
    a("s_mov_b32 s77, 0xffff0000")
    a(f"s_waitcnt vmcnt({vm.need({'SR'})})")
    for i in range(16):
        a(f"v_lshlrev_b32 v{48+2*i}, 16, v{32+i}")
        a(f"v_and_b32 v{49+2*i}, s77, v{32+i}")
    def half_sum(v, t):
        for c in ("quad_perm:[1,0,3,2]", "quad_perm:[2,3,0,1]", "row_half_mirror", "row_mirror"):
            a("s_nop 1")
            a(f"v_add_f32_dpp v{v}, v{v}, v{v} {c} row_mask:0xf bank_mask:0xf")
        a(f"v_mov_b32 v{t}, v{v}")
        a("s_nop 1")
        a(f"v_permlane16_swap_b32 v{v}, v{t}")
        a("s_nop 1")
        a(f"v_add_f32 v{v}, v{v}, v{t}")
    a("v_pk_add_f32 v[32:33], v[48:49], v[50:51]")
    a("v_pk_add_f32 v[34:35], v[52:53], v[54:55]")
    for i in range(4, 16):
        d = 32 + 2*(i & 1)
        a(f"v_pk_add_f32 v[{d}:{d+1}], v[{d}:{d+1}], v[{48+2*i}:{49+2*i}]")
    a("v_pk_add_f32 v[32:33], v[32:33], v[34:35]")
    a("v_add_f32 v32, v32, v33")
    half_sum(32, 33)
    a(f"v_mul_f32 v32, {f32(-1.0/1024)}, v32")
    for i in range(16):
        a(f"v_pk_add_f32 v[{48+2*i}:{49+2*i}], v[{48+2*i}:{49+2*i}], v[32:33] op_sel_hi:[1,0]")
    a("v_pk_mul_f32 v[34:35], v[48:49], v[48:49]")
    a("v_pk_mul_f32 v[36:37], v[50:51], v[50:51]")
    for i in range(2, 16):
        d = 34 + 2*(i & 1)
        a(f"v_pk_fma_f32 v[{d}:{d+1}], v[{48+2*i}:{49+2*i}], v[{48+2*i}:{49+2*i}], v[{d}:{d+1}]")
    a("v_pk_add_f32 v[34:35], v[34:35], v[36:37]")
    a("v_add_f32 v34, v34, v35")
    half_sum(34, 35)
    a(f"v_mul_f32 v34, {f32(1.0/1024)}, v34")
    a("v_cvt_pk_bf16_f32 v33, v32, v34")
    a("v_lshlrev_b32 v20, 16, v33")
    a("v_and_b32 v34, s77, v33")
    a(f"v_add_f32 v34, {f32(1e-5)}, v34")
    a("v_cvt_pk_bf16_f32 v34, v34, v34")
    a("v_and_b32 v34, s77, v34")
    a("v_sqrt_f32 v34, v34")
    a("v_lshrrev_b32 v18, 5, v1")
    a("v_cvt_pk_bf16_f32 v34, v34, v34")
    a("v_and_b32 v34, s77, v34")
    a("v_rcp_f32 v21, v34")
    a("v_lshlrev_b32 v18, 3, v18")
    a("s_mov_b32 exec_lo, 1")
    a("s_mov_b32 exec_hi, 1")
    vm.issue("SS")
    a(f"buffer_store_dwordx2 v[20:21], v18, s[4:7], s79 offen offset:{WS_ST} sc1")
    a("s_mov_b64 exec, -1")
    for r in range(32, 80):
        a(f"v_mov_b32 v{r}, 0")
    n = vm.need({("W", 0), ("X", 0)})
    a(f"s_waitcnt vmcnt({n})")
    a("s_barrier")
    for tb in range(4): a(b_read(0, tb))
    for nb in range(20):
        for rd in range(2): a(a_read(0, nb, rd))
    a("s_mov_b32 s29, 7")
    if prof: a("s_waitcnt lgkmcnt(0)"); prof_stamp(a, 1); a("s_waitcnt lgkmcnt(0)")

    hooks = {}
    def hook(i, m, f): hooks.setdefault((i, m), []).append(f)
    def ins(*ls): return lambda: [("ins", l) for l in ls]
    def h_poll():
        vm.issue("PL")
        return [("ins", "buffer_load_dword v18, off, s[24:27], 0 sc1")]
    hook(28, 79, h_poll)
    hook(29, 40, ins("v_and_b32 v4, 15, v1", "v_lshrrev_b32 v3, 4, v1"))
    hook(29, 42, ins("v_mul_u32_u24 v2, 1280, v3", f"v_cmp_gt_u32 vcc, {nslot-4}, v3"))
    hook(29, 44, ins("v_lshl_add_u32 v2, v4, 2, v2", "v_lshlrev_b32 v4, 3, v4"))
    hook(29, 46, ins("v_add_u32 v3, 5120, v2", "v_mov_b32 v5, 0x40000000"))
    hook(29, 48, ins("v_cndmask_b32 v3, v5, v3, vcc", "s_mul_i32 s78, s56, 10240"))
    hook(29, 50, ins("s_mul_i32 s77, s28, 320", "s_add_u32 s78, s78, s77", f"s_add_u32 s78, s78, {WS_CS:#x}"))
    hook(29, 52, ins("s_lshl_b32 s79, s57, 11", "s_lshl_b32 s77, s28, 9", "s_add_u32 s79, s79, s77"))
    def h_chk():
        return [("wait", "vmcnt", vm.need({"PL"})), ("ins", "v_readfirstlane_b32 s77, v18"),
                ("ins", "s_cmp_lt_u32 s77, 256"), ("ins", f"s_cbranch_scc1 L_slow{typ}"), ("ins", f"L_slowr{typ}:")]
    PC = 62
    hook(29, PC, h_chk)
    def h_ld(q):
        def f():
            vm.issue("HL")
            if q < 10: return [("ins", f"buffer_load_dword a{CSP+q}, v{2+(q&1)}, s[4:7], s78 offen offset:{64*(q>>1)} sc1")]
            tb = q - 10
            return [("ins", f"buffer_load_dwordx2 v[{ST+2*tb}:{ST+2*tb+1}], v4, s[4:7], s79 offen offset:{WS_ST+128*tb} sc1")]
        return f
    for q in range(14): hook(29, PC + 1 + q, h_ld(q))
    hook(31, 30, lambda: [("wait", "vmcnt", vm.need({"HL"}))])
    for q in range(10):
        c_ = ar(CSA + 4*(q >> 1), 4)
        hook(31, 30 + q, ins(f"v_mfma_f32_16x16x4_f32 {c_}, a{CSP+q}, v19, {c_}"))
    hook(31, 20, ins("v_and_b32 v2, 48, v1", "s_mul_i32 s77, s28, 320", f"s_add_u32 s77, s77, {CBASE}"))
    hook(31, 22, ins("v_add_u32 v3, s77, v2", f"v_add_u32 v0, {CBASE}, v2"))
    hook(31, 56, ins("s_mov_b32 exec_lo, 0x10001", "s_mov_b32 exec_hi, 0x10001",
                     *[f"ds_write_b128 v3, {ar(CSA+4*q,4)} offset:{64*q}" for q in range(5)], "s_mov_b64 exec, -1"))
    if typ == 2:
        hook(31, 24, ins("s_lshl_b32 s77, s28, 9", f"s_add_u32 s77, s77, {CBASE+1280}", "v_lshrrev_b32 v4, 1, v4"))
        hook(31, 26, ins("v_add_u32 v5, s77, v4", "v_add_u32 v6, s77, v2", f"v_add_u32 v4, {CBASE}, v4"))
        hook(31, 44, ins("s_mov_b64 exec, 0xffff",
                         *[f"ds_write2_b32 v5, v{ST+2*tb}, v{ST+2*tb+1} offset0:{16*tb} offset1:{64+16*tb}" for tb in range(4)], "s_mov_b64 exec, -1"))
    hook(31, 70, ins("s_waitcnt lgkmcnt(0)", "s_barrier"))
    def gen_step(i):
        items = []
        dm = list(sched[i])
        ws_ = [e for e in dm if e[0] == "W"]; xs_ = [e for e in dm if e[0] == "X"]
        dm = []
        while ws_ or xs_:
            if xs_: dm.append(xs_.pop(0))
            if ws_: dm.append(ws_.pop(0))
        last = (i == NS - 1)
        rq = []
        dq = []
        cand = [m for m in range(80) if m % 4 == 1 and m > bar_pos + 8]
        pos = {}
        for q, e in enumerate(dm):
            pos[cand[int(q * len(cand) / len(dm))]] = e
        for m in range(80):
            nb, t = m >> 2, m & 3
            tb = t if (nb & 1) == 0 else 3 - t
            n = lg.need({("A", i, nb), ("B", i, tb)}, cap=lg_cap)
            items.append(("wait", "lgkmcnt", n))
            A = ar(AF + 4*nb, 4); B = ar(BF + 16*(i&1) + 4*tb, 4)
            if typ == 2 and nb >= 4: A, B = B, A
            p_, r_ = accreg(nb, tb)
            c_ = vr(r_, 4, p_)
            items.append(("ins", f"v_mfma_f32_16x16x32_bf16 {c_}, {A}, {B}, {c_}"))
            if m == bar_pos and "nocs" not in hack:
                k = i & 3 if i < 28 else i - 24
                if i < 28:
                    items.append(("ins", "s_cmp_lg_u32 s74, 0"))
                    items.append(("ins", f"s_cbranch_scc1 L_cs{typ}_{k}"))
                else:
                    items.append(("ins", f"s_branch L_cs{typ}_{k}"))
                items.append(("ins", f"L_csr{typ}_{k}:"))
            for x in hooks.get((i, m), []):
                items += x()
            if not last:
                if t == 3:
                    rq.append(("A", nb, 0)); rq.append(("A", nb, 1))
                if m == bar_pos:
                    need = {("W", i+1)}
                    if i & 1: need.add(("X", (i+1) >> 1))
                    items.append(("wait", "vmcnt", vm.need(need)))
                    items.append(("ins", "s_barrier"))
                    if i < 28 and (i & 3) == 2:
                        items.append(("ins", "s_cmp_eq_u32 s29, s76"))
                        items.append(("ins", f"s_cbranch_scc1 L_sig{typ}"))
                        items.append(("ins", f"L_sigr{typ}:"))
                    rq = [("B", tb_) for tb_ in range(4)] + rq
                elif m > bar_pos and rq and not dq and m not in pos:
                    e = rq.pop(0)
                    items.append(("ins", b_read(i+1, e[1]) if e[0] == "B" else a_read(i+1, e[1], e[2])))
            if dq:
                for l in dq: items.append(("ins", l))
                dq = []
            if m in pos:
                e = pos[m]
                g1, g2 = (w_dma if e[0] == "W" else x_dma)(e[1], e[2])
                for l in g1: items.append(("ins", l))
                dq = g2
        assert not dq
        while rq:
            e = rq.pop(0)
            items.append(("ins", a_read(i+1, e[1], e[2])))
        return items

    iters = []
    for it in range(8):
        items = []
        for i in range(4*it, 4*it+4):
            items += gen_step(i)
        iters.append(items)
    def extra():
        a("s_cmp_eq_u32 s29, s75")
        a(f"s_cbranch_scc1 L_cst{typ}")
        a.label(f"L_cstr{typ}")
        a("s_sub_u32 s77, s29, 1")
        a("s_cmp_eq_u32 s77, s75")
        a("s_cselect_b32 s74, 1, 0")
        a(f"s_cmp_le_u32 s77, {7-nslot}")
        a("s_cselect_b32 s74, 1, s74")
        if "trace" in hack:
            a("s_memtime s[98:99]")
            a("s_memrealtime s[100:101]")
            a("s_waitcnt lgkmcnt(0)")
            a("s_sub_u32 s98, s98, s80")
            a("s_sub_u32 s100, s100, s92")
            a("v_cmp_eq_u32 vcc, s29, v1")
            a("v_mov_b32 v29, s98")
            a("v_cndmask_b32 v30, v30, v29, vcc")
            a("v_mov_b32 v29, s100")
            a("v_cndmask_b32 v31, v31, v29, vcc")
    loop_emit(a, iters, 7, f"L_g1_loop{typ}", 29, extra)

    if prof: prof_stamp(a, 2)
    if prof: a("s_waitcnt lgkmcnt(0)")
    lg = Counter(15)
    def cread(nb, r):
        lg.issue(("C", nb))
        a(f"ds_read_b128 {vr(r,4)}, v0 offset:{64*nb}")
    def lw(tags):
        n = lg.need(set(tags))
        if n is not None: a(f"s_waitcnt lgkmcnt({n})")
    def smread(tp):
        for half in range(2):
            for q in range(2):
                lg.issue(("SM", tp))
                a(f"ds_read_b128 {vr(8+8*half+4*q,4)}, v6 offset:{256*q + 64*(2*tp+half)}")
    if typ == 1:
        cread(4, 12); cread(5, 16)
    else:
        smread(0)
        for q in range(4):
            lg.issue(("CV", 0))
            a(f"ds_read2_b32 v[{24+2*q}:{25+2*q}], v4 offset0:{16*(4+2*q)} offset1:{16*(5+2*q)}")
        a("v_add_u32 v4, 768, v4")
    a("v_and_b32 v7, 48, v1")
    a("v_lshlrev_b32 v7, 5, v7")
    a("v_bfe_u32 v2, v1, 3, 1")
    a("v_lshl_add_u32 v2, v2, 8, v7")
    a("v_and_b32 v3, 7, v1")
    a("v_lshl_add_u32 v2, v3, 4, v2")
    if typ == 1:
        a("v_lshlrev_b32 v3, 4, v1")
    else:
        a("v_and_b32 v3, 15, v1")
        a("v_lshl_add_u32 v3, v3, 4, v7")
    a("s_lshl_b32 s58, s57, 3")
    a("s_lshl_b32 s59, s28, 1")
    a("s_add_u32 s58, s58, s59")
    a("s_and_b32 s60, s56, 15")
    a("s_lshl_b32 s60, s60, 7")
    a("s_add_u32 s60, s60, s58")
    a("s_cmp_ge_u32 s56, 16")
    a("s_cselect_b32 s61, 12, 11")
    a(f"s_mov_b32 s62, {WS_Q:#x}")
    a(f"s_cselect_b32 s62, {WS_KV:#x}, s62")
    a(f"s_mov_b32 s44, {f32(32**-0.5 * LOG2E)}")
    a("s_cselect_b32 s44, 1.0, s44")
    a("s_mov_b32 s45, s44")
    for hh in range(2):
        for tp in range(2):
            d = 64 + hh*2 + tp
            a(f"s_add_u32 s{d}, s60, {hh*64 + tp}")
            a(f"s_lshl_b32 s{d}, s{d}, s61")
            a(f"s_add_u32 s{d}, s{d}, s62")
    if typ == 1:
        a("s_lshr_b32 s60, s58, 2")
        a("s_mul_i32 s60, s60, 144")
        a("s_lshl_b32 s61, s56, 2")
        a("s_add_u32 s60, s60, s61")
        a("s_lshl_b32 s60, s60, 1")
        a("s_and_b32 s61, s28, 1")
        a("s_add_u32 s60, s60, s61")
        a("s_lshl_b32 s60, s60, 12")
        a(f"s_add_u32 s70, s60, {WS_H:#x}")
        a(f"s_mov_b32 s46, {f32(-LOG2E)}")
        a("s_mov_b32 s47, s46")
        a("s_mov_b32 s72, 1.0")
        a("s_mov_b32 s73, 1.0")
    else:
        a("s_sub_u32 s60, s56, 28")
        a("s_lshl_b32 s60, s60, 9")
        a("s_add_u32 s60, s60, s58")
        a("s_lshl_b32 s60, s60, 12")
        a(f"s_add_u32 s70, s60, {WS_KV:#x}")
        a(f"s_add_u32 s71, s70, 4096")
    LO = "op_sel_hi:[1,0,1]"; HI = "op_sel:[0,1,0] op_sel_hi:[1,1,1]"
    def p2(r): return f"v[{r}:{r+1}]"
    def corr(d, c, tb, stb):
        for r in range(2):
            a(f"v_pk_fma_f32 {p2(d+2*r)}, {p2(c+2*r)}, {p2(stb+2*tb)}, {p2(d+2*r)} {LO}")
    def qk_line(stb, rq, cb, tmp):
        for tb in range(4): a(f"v_mul_f32 v{rq+2*tb}, s44, v{stb+2*tb+1}")
        for hh in range(2):
            lw([("C", 2*hh), ("C", 2*hh+1)])
            for tb in range(4):
                base = (hh*4 + tb) * 8
                t0 = tmp + 8 * (tb & 1)
                for r in range(8):
                    a(f"v_accvgpr_read_b32 v{t0+r}, a{base+r}")
                corr(t0, cb[2*hh], tb, stb); corr(t0 + 4, cb[2*hh+1], tb, stb)
                for r in range(4):
                    a(f"v_pk_mul_f32 {p2(t0+2*r)}, {p2(t0+2*r)}, {p2(rq+2*tb)} op_sel_hi:[1,0]")
                for r in range(4):
                    a(f"v_cvt_pk_bf16_f32 v{t0+r}, v{t0+2*r}, v{t0+2*r+1}")
                a(f"buffer_store_dwordx4 {vr(t0,4)}, v2, s[4:7], s{64+hh*2+(tb>>1)} offen offset:{(tb&1)*128}{sc}")
    if typ == 1:
        PQ = 4
        for tb in range(4):
            a(f"v_mul_f32 v{PQ+2*tb}, s46, v{ST+2*tb+1}")
            a(f"v_rcp_f32 v{PQ+2*tb+1}, v{ST+2*tb+1}")
        cregs = {0: [12, 16, 12, 16], 1: [36, 44, 52, 60], 2: [160, 164, 168, 172], 3: [68, 76, 84, 92]}
        def nbs(e): return [4+2*e, 5+2*e, 12+2*e, 13+2*e]
        a("s_nop 3")
        for e in range(4):
            cb = cregs[e]; nb_ = nbs(e)
            if e in (1, 2):
                for q in range(4): cread(nbs(e+1)[q], cregs[e+1][q])
            lw([("C", nb_[0]), ("C", nb_[1])])
            if e == 0:
                for tb in range(4):
                    R = 32 + tb*8
                    corr(R, cb[0], tb, ST); corr(R + 4, cb[1], tb, ST)
                cread(nb_[2], cb[2]); cread(nb_[3], cb[3])
            for tb in range(4):
                R = 32 + (e*4+tb)*8
                pu, U = accreg(12 + 2*e, tb)
                if pu == "a":
                    for r in range(8):
                        a(f"v_accvgpr_read_b32 v{176+r}, a{U+r}")
                    U = 176
                if e > 0:
                    corr(R, cb[0], tb, ST); corr(R + 4, cb[1], tb, ST)
                for r in range(4):
                    a(f"v_pk_mul_f32 {p2(R+2*r)}, {p2(R+2*r)}, {p2(PQ+2*tb)} op_sel_hi:[1,0]")
                for r in range(8):
                    a(f"v_exp_f32 v{R+r}, v{R+r}")
                lw([("C", nb_[2]), ("C", nb_[3])])
                corr(U, cb[2], tb, ST); corr(U + 4, cb[3], tb, ST)
                for r in range(4):
                    a(f"v_pk_fma_f32 {p2(R+2*r)}, {p2(R+2*r)}, {p2(PQ+2*tb)}, {p2(PQ+2*tb)} op_sel:[0,1,1] op_sel_hi:[1,1,1]")
                for r in range(8):
                    a(f"v_rcp_f32 v{R+r}, v{R+r}")
                for r in range(4):
                    a(f"v_pk_mul_f32 {p2(R+2*r)}, {p2(R+2*r)}, {p2(U+2*r)}")
                for r in range(4):
                    a(f"v_cvt_pk_bf16_f32 v{R+r}, v{R+2*r}, v{R+2*r+1}")
                a(f"buffer_store_dwordx4 v[{R}:{R+3}], v3, s[4:7], s70 offen offset:{tb*1024}{sc}")
                if e == 0 and tb == 1:
                    for q in range(4): cread(q, 160 + 4*q)
            if e < 3:
                a("s_add_u32 s70, s70, 8192")
            if e == 0:
                for q in range(4): cread(nbs(1)[q], cregs[1][q])
                qk_line(ST, 12, [160, 164, 168, 172], 176)
    else:
        a("s_nop 3")
        for tp in range(2):
            lw([("SM", tp)])
            for nb in range(4, 20):
                hd, db = (nb - 4) >> 1, nb & 1
                lw([("CV", (nb - 4) >> 3)])
                cp = (24 if nb < 12 else 40 - 8) + ((nb - 4) & ~1)
                rr = []
                for half in range(2):
                    p_, r_ = accreg(nb, 2*tp + half)
                    if p_ == "a":
                        t = 72 + 4*half + 32*db
                        for r in range(4):
                            a(f"v_accvgpr_read_b32 v{t+r}, a{r_+r}")
                        r_ = t
                    rr.append(r_)
                for half in range(2):
                    for r in range(2):
                        d = p2(rr[half] + 2*r)
                        a(f"v_pk_fma_f32 {d}, {p2(8+8*half+2*r)}, {p2(cp)}, {d} {HI if db else LO}")
                for half in range(2):
                    for r in range(2):
                        d = p2(rr[half] + 2*r)
                        a(f"v_pk_mul_f32 {d}, {d}, {p2(12+8*half+2*r)}")
                for half in range(2):
                    for r in range(2):
                        a(f"v_cvt_pk_bf16_f32 v{rr[0]+2*half+r}, v{rr[half]+2*r}, v{rr[half]+2*r+1}")
                a(f"buffer_store_dwordx4 {vr(rr[0],4)}, v3, s[4:7], s{70+tp} offen offset:{2048 + db*256}{sc}")
                if db and hd < 7:
                    a(f"s_add_u32 s{70+tp}, s{70+tp}, {64*4096}")
                if tp == 0 and nb == 5:
                    for q in range(4):
                        lg.issue(("CV", 1))
                        a(f"ds_read2_b32 v[{40+2*q}:{41+2*q}], v4 offset0:{16*(2*q)} offset1:{16*(2*q+1)}")
            if tp == 0:
                smread(1)
                for q in range(4): cread(q, [136, 140, 168, 172][q])
                for tb in range(4):
                    lg.issue("S1")
                    a(f"ds_read2_b32 {p2(200+2*tb)}, v5 offset0:{16*tb} offset1:{64+16*tb}")
        lw(["S1"])
        qk_line(200, 232, [136, 140, 168, 172], 8)
    if prof:
        prof_stamp(a, 3)
        a("s_waitcnt vmcnt(0)")
        prof_stamp(a, 4); prof_real(a, 1)
        prof_store(a, 5, 4, 28, 1)
        if "trace" in hack:
            a("s_add_u32 s96, s96, 0x40000")
            a("v_mbcnt_lo_u32_b32 v0, -1, 0")
            a("v_lshlrev_b32 v0, 3, v0")
            a("v_cmp_gt_u32 vcc, 64, v0")
            a("s_and_saveexec_b64 s[98:99], vcc")
            a("buffer_store_dwordx2 v[30:31], v0, s[4:7], s96 offen")
    a("s_endpgm")
    for k in range(8):
        if "nocs" in hack: break
        a.label(f"L_cs{typ}_{k}")
        a("s_waitcnt lgkmcnt(0)")
        for w in range(4):
            if w < 3:
                a(f"s_cmp_lg_u32 s28, {w}")
                a(f"s_cbranch_scc1 L_cs{typ}_{k}_{w+1}")
            for q in range(5):
                c_ = ar(CSA + 4*q, 4)
                a(f"v_mfma_f32_16x16x32_bf16 {c_}, {ar(AF+4*(5*w+q),4)}, {vr(ONES,4)}, {c_}")
            a(f"s_branch L_csr{typ}_{k}")
            if w < 3: a.label(f"L_cs{typ}_{k}_{w+1}")
    a.label(f"L_cst{typ}")
    a("v_and_b32 v18, 48, v1")
    a("s_mov_b32 exec_lo, 0x10001")
    a("s_mov_b32 exec_hi, 0x10001")
    for q in range(5):
        a(f"buffer_store_dwordx4 {ar(CSA+4*q,4)}, v18, s[4:7], s78 offen offset:{64*q} sc1")
    a("s_mov_b64 exec, -1")
    a("s_nop 1")
    for r in range(20): a(f"v_accvgpr_write_b32 a{CSA+r}, 0")
    a(f"s_branch L_cstr{typ}")
    a.label(f"L_sig{typ}")
    a("s_mov_b64 exec, 1")
    a("buffer_atomic_add v7, off, s[24:27], 0 sc1")
    a("s_mov_b64 exec, -1")
    a(f"s_branch L_sigr{typ}")
    a.label(f"L_slow{typ}")
    a("s_mov_b32 s29, 0x40000")
    a.label(f"L_slowl{typ}")
    a("buffer_load_dword v18, off, s[24:27], 0 sc1")
    a("s_waitcnt vmcnt(0)")
    a("v_readfirstlane_b32 s77, v18")
    a("s_cmp_ge_u32 s77, 256")
    a(f"s_cbranch_scc1 L_slowr{typ}")
    a("s_sleep 2")
    a("s_sub_u32 s29, s29, 1")
    a("s_cmp_lg_u32 s29, 0")
    a(f"s_cbranch_scc1 L_slowl{typ}")
    a(f"s_branch L_slowr{typ}")
```

```python
from gen_common import *

def wave_allsum(a, v, t):
    a(f"s_nop 1")
    a(f"v_add_f32_dpp v{v}, v{v}, v{v} quad_perm:[1,0,3,2] row_mask:0xf bank_mask:0xf")
    a(f"s_nop 1")
    a(f"v_add_f32_dpp v{v}, v{v}, v{v} quad_perm:[2,3,0,1] row_mask:0xf bank_mask:0xf")
    a(f"s_nop 1")
    a(f"v_add_f32_dpp v{v}, v{v}, v{v} row_half_mirror row_mask:0xf bank_mask:0xf")
    a(f"s_nop 1")
    a(f"v_add_f32_dpp v{v}, v{v}, v{v} row_mirror row_mask:0xf bank_mask:0xf")
    a(f"v_mov_b32 v{t}, v{v}")
    a(f"s_nop 1")
    a(f"v_permlane16_swap_b32 v{v}, v{t}")
    a(f"s_nop 1")
    a(f"v_add_f32 v{v}, v{v}, v{t}")
    a(f"v_mov_b32 v{t}, v{v}")
    a(f"s_nop 1")
    a(f"v_permlane32_swap_b32 v{v}, v{t}")
    a(f"s_nop 1")
    a(f"v_add_f32 v{v}, v{v}, v{t}")

def gen_ln(a, name, NWG=512, prof=False):
    kernel_begin(a, name)
    a(f"s_cmp_ge_u32 s2, {NWG}")
    a(f"s_cbranch_scc1 L_ln_end")
    if prof: prof_stamp(a, 0); prof_real(a, 0)
    a("s_load_dwordx2 s[4:5], s[0:1], 0")
    a("s_load_dwordx2 s[6:7], s[0:1], 72")
    a("v_lshrrev_b32 v1, 6, v0")
    a("v_and_b32 v2, 63, v0")
    a("v_lshlrev_b32 v1, 11, v1")
    a("v_lshl_add_u32 v1, v2, 4, v1")
    a("s_lshl_b32 s3, s2, 13")
    a("s_waitcnt lgkmcnt(0)")
    srd(a, 8, 4, 2048 * 2048)
    srd(a, 12, 6, WS_END)
    a("buffer_load_dwordx4 v[4:7], v1, s[8:11], s3 offen")
    a("buffer_load_dwordx4 v[8:11], v1, s[8:11], s3 offen offset:1024")
    a("s_mov_b32 s16, 0xffff0000")
    a("s_waitcnt vmcnt(0)")
    for i in range(8):
        a(f"v_lshlrev_b32 v{16+2*i}, 16, v{4+i}")
        a(f"v_and_b32 v{17+2*i}, s16, v{4+i}")
    a("v_add_f32 v12, v16, v17")
    a("v_add_f32 v13, v18, v19")
    for i in range(2, 8):
        a(f"v_add_f32 v{12+(i&1)}, v{12+(i&1)}, v{16+2*i}")
        a(f"v_add_f32 v{12+((i+1)&1)}, v{12+((i+1)&1)}, v{17+2*i}")
    a("v_add_f32 v12, v12, v13")
    wave_allsum(a, 12, 13)
    a(f"v_mul_f32 v12, {f32(1.0/1024)}, v12")
    a("v_sub_f32 v13, v16, v12")
    a("v_mul_f32 v14, v13, v13")
    for i in range(1, 16):
        a(f"v_sub_f32 v13, v{16+i}, v12")
        a(f"v_fma_f32 v14, v13, v13, v14")
    wave_allsum(a, 14, 13)
    a(f"v_mul_f32 v14, {f32(1.0/1024)}, v14")
    a("v_cvt_pk_bf16_f32 v13, v12, v14")
    a("v_lshlrev_b32 v12, 16, v13")
    a("v_and_b32 v14, s16, v13")
    a(f"v_add_f32 v14, {f32(1e-5)}, v14")
    a("v_cvt_pk_bf16_f32 v14, v14, v14")
    a("v_and_b32 v14, s16, v14")
    a("v_sqrt_f32 v14, v14")
    a("s_nop 0")
    a("v_cvt_pk_bf16_f32 v14, v14, v14")
    a("v_and_b32 v14, s16, v14")
    a("v_rcp_f32 v14, v14")
    for i in range(16):
        a(f"v_sub_f32 v{16+i}, v{16+i}, v12")
    for i in range(8):
        a(f"v_cvt_pk_bf16_f32 v{4+i}, v{16+2*i}, v{17+2*i}")
    for i in range(8):
        a(f"v_lshlrev_b32 v{16+2*i}, 16, v{4+i}")
        a(f"v_and_b32 v{17+2*i}, s16, v{4+i}")
    for i in range(16):
        a(f"v_mul_f32 v{16+i}, v{16+i}, v14")
    for i in range(8):
        a(f"v_cvt_pk_bf16_f32 v{4+i}, v{16+2*i}, v{17+2*i}")
    if WS_XN:
        a(f"s_add_u32 s3, s3, {WS_XN:#x}")
    a("buffer_store_dwordx4 v[4:7], v1, s[12:15], s3 offen")
    a("buffer_store_dwordx4 v[8:11], v1, s[12:15], s3 offen offset:1024")
    if prof:
        a("s_waitcnt vmcnt(0)")
        prof_stamp(a, 1); prof_real(a, 1)
        a("v_lshrrev_b32 v1, 6, v0")
        a("s_nop 1")
        a("v_readfirstlane_b32 s28, v1")
        prof_store(a, 2, 12, 28, 0)
    a.label("L_ln_end")
    a("s_endpgm")
    return dict(name=name, grid=NWG, block=256, lds=0, vgpr=32, accum=32)
```

```python
from gen_common import *
from gen_g1 import loop_emit
from gen_att import w_lane_setup, w_read_setup, emit_items

KVBASE = 0
KSLOT = 8192
KT = 144

RQ = 16
RS = 32
RM = 64
RO = 96
RL = 128
RP = 136
RK = 152
RV = 168
R1 = 184
RLV = 188
VIDX = 14; VSIG = 10; VFL = 11; VSA = 12; VFA = 13

def att_body(a, o, SYNC):
    prof = o.get("prof", False)
    rs = o.get("rs", 3)
    pk = o.get("pk", 0)
    pair = o.get("pair", 1)
    R = o.get("R", 5)
    vm = Counter(63); lg = Counter(15)
    a("v_lshlrev_b32 v2, 4, v1")
    a(f"v_add_u32 v3, {KVBASE}, v2")
    a("s_lshl_b32 s58, s56, 6")
    a("s_lshl_b32 s59, s57, 3")
    a("s_lshl_b32 s60, s28, 1")
    a("s_add_u32 s59, s59, s60")
    a("s_add_u32 s60, s58, s59")
    a("s_lshl_b32 s60, s60, 11")
    a(f"s_add_u32 s60, s60, {WS_Q:#x}")
    a("s_lshl_b32 s33, s58, 12")
    a(f"s_add_u32 s33, s33, {WS_KV:#x}")
    a("s_mov_b32 s36, s33")
    a("s_lshl_b32 s41, s28, 11")
    a("s_add_u32 s33, s33, s41")
    a(f"s_add_u32 s41, s41, {KVBASE}")
    a("s_lshr_b32 s61, s59, 2")
    a(f"s_mul_i32 s61, s61, {KT}")
    a("s_add_u32 s61, s61, s56")
    a("s_lshl_b32 s61, s61, 13")
    a("s_and_b32 s62, s59, 3")
    a("s_lshl_b32 s62, s62, 11")
    a("s_add_u32 s61, s61, s62")
    a(f"s_add_u32 s61, s61, {WS_H + 112*8192:#x}")
    a("s_add_u32 s62, s61, 2048")
    fv = o.get("fv", 1)
    a(f"s_lshl_b32 s63, s59, {(10, 11, 15)[fv]}")
    a(f"s_lshl_b32 s67, s56, {(2, 7, 11)[fv]}")
    a("s_add_u32 s63, s63, s67")
    a(f"s_add_u32 s63, s63, {WS_FLAG:#x}")
    a("s_bfe_u32 s66, s2, 0x20001")
    a("s_lshl_b32 s66, s66, 2")
    a("s_bfe_u32 s67, s2, 0x20003")
    a("s_add_u32 s66, s66, s67")
    a("s_lshl_b32 s66, s66, 1")
    a("s_add_u32 s66, s66, s28")
    a(f"s_lshl_b32 s66, s66, {(11, 12, 16)[fv]}")
    if fv != 1:
        a("s_and_b32 s67, s2, 1")
        a("s_lshl_b32 s67, s67, 3")
        a("s_add_u32 s67, s67, s57")
        a("s_lshl_b32 s67, s67, 7")
        a("s_add_u32 s66, s66, s67")
    a(f"s_add_u32 s66, s66, {WS_FLAG:#x}")
    a("s_waitcnt lgkmcnt(0)")
    srd(a, 4, 50, WS_END)
    def kv_dma(stage):
        vm.issue(("KV", stage)); vm.issue(("KV", stage))
        return [[f"s_add_u32 m0, s41, {(stage % R) * KSLOT}"],
                ["buffer_load_dwordx4 v2, s[4:7], s33 offen lds"],
                ["buffer_load_dwordx4 v2, s[4:7], s33 offen offset:1024 lds", "s_add_u32 s33, s33, 8192"]]
    def flat(gs):
        r = []
        for i, g in enumerate(gs):
            r += g
            if i == 0: r.append("s_nop 0")
        return r
    for l in flat(kv_dma(0)): a(l)
    for i in range(4):
        vm.issue("Q")
        a(f"buffer_load_dwordx4 {vr(RQ+4*i,4)}, v2, s[4:7], s60 offen offset:{1024*i}")
    for st in range(1, R - 1):
        for l in flat(kv_dma(st)): a(l)
    a(f"v_mov_b32 v{VSIG}, 0")
    a(f"v_and_b32 v{VFA}, 3, v1")
    a(f"v_lshlrev_b32 v{VFA}, 2, v{VFA}")
    a(f"v_add_u32 v{VFA}, {SYNC}, v{VFA}")
    a("s_lshl_b32 s58, s28, 2")
    a(f"s_add_u32 s58, s58, {SYNC}")
    a(f"v_mov_b32 v{VSA}, s58")
    a(f"ds_write_b32 v{VSA}, v{VSIG}")
    a(f"ds_write_b32 v{VSA}, v{VSIG} offset:16")
    a(f"ds_write_b32 v{VSA}, v{VSIG} offset:32")
    a("s_mov_b32 s37, 0")
    a("v_lshrrev_b32 v4, 4, v1")
    a("v_lshrrev_b32 v5, 2, v1")
    a("v_xor_b32 v4, v4, v5")
    a("v_and_b32 v4, 1, v4")
    a("v_cmp_eq_u32 vcc, 0, v4")
    a("v_mov_b32 v5, 0x3f803f80")
    if rs == 3:
        a("v_and_b32 v4, 4, v1")
        a("v_cmp_eq_u32 vcc, 0, v4")
        a("s_nop 1")
        for i in range(2):
            a(f"v_cndmask_b32 v{R1+i}, 0, v5, vcc")
            a(f"v_cndmask_b32 v{R1+2+i}, v5, 0, vcc")
        a("v_and_b32 v4, 1, v1")
        a("v_mul_u32_u24 v4, 0xaaaa, v4")
        a(f"v_add_u32 v{VIDX}, 0x4444, v4")
    else:
        for i in range(4):
            a(f"v_cndmask_b32 v{R1+i}, 0, v5, vcc")
    for r in range(RO, RO + 40): a(f"v_mov_b32 v{r}, 0")
    for r in range(RLV, RLV + 4): a(f"v_mov_b32 v{r}, 0")
    a("v_and_b32 v6, 7, v1")
    a("v_bfe_u32 v7, v1, 3, 1")
    a("v_lshl_add_u32 v6, v7, 6, v6")
    a("v_bfe_u32 v7, v1, 4, 1")
    a("v_lshl_add_u32 v6, v7, 3, v6")
    a("v_lshrrev_b32 v7, 5, v1")
    a("v_lshl_add_u32 v6, v7, 4, v6")
    a("v_lshlrev_b32 v6, 4, v6")

    def rd(kind, t, s):
        base = (RK if kind == "K" else RV) + 8 * (t & 1) + 4 * s
        off = ((t >> 1) % R) * KSLOT + (t & 1) * 4096 + (0 if kind == "K" else 2048) + s * 1024
        lg.issue((kind, t, s))
        return f"ds_read_b128 {vr(base,4)}, v3 offset:{off}"
    def mS(X, t, s, c0=None):
        D = vr(RS + 16*X, 16)
        C = D if s == 1 else (c0 if c0 is not None else vr(RM + 16*X, 16))
        return ([("K", t, s)], f"v_mfma_f32_32x32x16_bf16 {D}, {vr(RK+8*(t&1)+4*s,4)}, {vr(RQ+8*X+4*s,4)}, {C}")
    def mPV(X, t, s):
        D = vr(RO + 16*X, 16)
        return ([("V", t, s)], f"v_mfma_f32_32x32x16_bf16 {D}, {vr(RV+8*(t&1)+4*s,4)}, {vr(RP+8*X+4*s,4)}, {D}")
    def mL(X, s):
        D = vr(RL + 4*X, 4)
        if rs == 3: return ([], f"v_smfmac_f32_16x16x64_bf16 {D}, {vr(R1,4)}, {vr(RP+8*X,8)}, v{VIDX}")
        return ([], f"v_mfma_f32_16x16x32_bf16 {D}, {vr(R1,4)}, {vr(RP+8*X+4*s,4)}, {D}")

    def valu(X):
        S = RS + 16*X; P = RP + 8*X
        e = [(8, f"v_exp_f32 v{S+i}, v{S+i}") for i in range(16)]
        c = [(4, f"v_cvt_pk_bf16_f32 v{P+i}, v{S+2*i}, v{S+2*i+1}") for i in range(8)]
        def adds(k):
            if (k >> 2) < rs: return []
            L = RLV + 2*X
            if pk: return [(4, f"v_pk_add_f32 v[{L}:{L+1}], v[{L}:{L+1}], v[{S+2*k}:{S+2*k+1}]")]
            return [(4, f"v_add_f32 v{L}, v{L}, v{S+2*k}"), (4, f"v_add_f32 v{L+1}, v{L+1}, v{S+2*k+1}")]
        seq = []
        for i in range(16):
            seq.append(e[i])
            if i >= 2 and i % 2 == 0 and i < 14:
                k = i // 2 - 1
                seq.append(c[k]); seq += adds(k)
        return seq + [c[6]] + adds(6) + [c[7]] + adds(7)

    NT = 64
    slow = []
    def phase(X, t, do_valu=True):
        Y = 1 - X
        items = []
        ms = []
        ts = t if X == 0 else t + 1
        tp = t - 1 if X == 0 else t
        if ts < NT: ms += [(32, mS(Y, ts, 0)), (32, mS(Y, ts, 1))]
        if tp >= 0:
            for s in range(2):
                hasl = (s == o.get("lpos", 0)) if rs == 3 else (s < rs)
                if hasl and pair: ms.append((0, mL(Y, s)))
                ms.append((32, mPV(Y, tp, s)))
                if hasl and not pair: ms.append((16, mL(Y, s)))
        extra = []
        pre = []
        if X == 0 and (t & 1) and t + 1 < NT:
            pre = [("chk", (t + 1) >> 1)]
        if t + 1 < NT:
            kind = "K" if X == 0 else "V"
            extra += [("rd", kind, t + 1, 0), ("rd", kind, t + 1, 1)]
        if X == 0 and not (t & 1) and t + 2 < NT:
            extra.append(("sig", (t >> 1) + 1))
        if X == 1 and not (t & 1) and t + 2 < NT:
            extra.append(("frd", (t >> 1) + 1))
        if X == 0 and (t & 1):
            st = ((t + 1) >> 1) - 2 + R
            if st < NT // 2: extra.append(("dma", st))
        va = valu(X) if do_valu else []
        tot = sum(c for c, _ in va); mt = sum(c for c, _ in ms)
        vi = 0; acc = 0; done = 0
        dq = []
        for mi, (mc, (deps, ins)) in enumerate(ms):
            n = lg.need(set(deps)) if deps else None
            items.append(("wait", "lgkmcnt", n))
            items.append(("ins", ins))
            if mi == 0:
                for p in pre:
                    items.append(("wait", "lgkmcnt", lg.need({("F", p[1])})))
                    items.append(("ins", f"v_cmp_ge_u32 vcc, s37, v{VFL}"))
                    items.append(("chk", p[1]))
                    items.append(("ins", "s_add_u32 s37, s37, 1"))
            if mc == 0: continue
            if dq:
                for l in dq.pop(0): items.append(("ins", l))
            elif extra:
                e = extra.pop(0)
                if e[0] == "rd":
                    items.append(("ins", rd(e[1], e[2], e[3])))
                    if extra and extra[0][0] == "rd" and mi == 0:
                        e = extra.pop(0); items.append(("ins", rd(e[1], e[2], e[3])))
                elif e[0] == "sig":
                    items.append(("ins", f"v_add_u32 v{VSIG}, 1, v{VSIG}"))
                    items.append(("wait", "vmcnt", vm.need({("KV", e[1])})))
                    lg.issue(("SG", e[1]))
                    items.append(("ins", f"ds_write_b32 v{VSA}, v{VSIG}"))
                elif e[0] == "frd":
                    if mi < len(ms) - 2:
                        extra.insert(0, e)
                    else:
                        lg.issue(("F", e[1]))
                        items.append(("ins", f"ds_read_b32 v{VFL}, v{VFA}"))
                else:
                    dq = kv_dma(e[1])
                    for l in dq.pop(0): items.append(("ins", l))
            acc += mc
            while vi < len(va) and (done + va[vi][0] / 2 <= tot * acc / mt or mi == len(ms) - 1):
                items.append(("ins", va[vi][1])); done += va[vi][0]; vi += 1
        while dq:
            for l in dq.pop(0): items.append(("ins", l))
        assert not dq and not extra and vi == len(va), (X, t, dq, extra)
        return items
    def fix(items, tag):
        r = []
        for x in items:
            if x[0] == "chk":
                k = len(slow); slow.append(k)
                r.append(("ins", f"s_cbranch_vccnz L_att_slow{k}"))
                r.append(("ins", f"L_att_ret{k}:"))
            else: r.append(x)
        return r

    n = vm.need({("KV", 0), "Q"})
    a(f"s_waitcnt vmcnt({n}) lgkmcnt(0)")
    a("s_barrier")
    if prof: prof_stamp(a, 1)
    a(rd("K", 0, 0)); a(rd("K", 0, 1)); a(rd("V", 0, 0)); a(rd("V", 0, 1))
    a("s_waitcnt lgkmcnt(0)"); lg.need({("V", 0, 1)})
    for X in range(2):
        for s in range(2): a(mS(X, 0, s, c0="0")[1])
    a("s_nop 7"); a("s_nop 7")
    for X in range(2):
        S = RS + 16*X
        a(f"v_max3_f32 v8, v{S}, v{S+1}, v{S+2}")
        for i in range(3, 15, 2): a(f"v_max3_f32 v8, v8, v{S+i}, v{S+i+1}")
        a(f"v_max_f32 v8, v8, v{S+15}")
        a("v_mov_b32 v9, v8")
        a("s_nop 1")
        a("v_permlane32_swap_b32 v8, v9")
        a("s_nop 1")
        a("v_max_f32 v8, v8, v9")
        for i in range(16): a(f"v_sub_f32 v{RM+16*X+i}, 0, v8")
    a("s_nop 1")
    for s in range(2): a(mS(0, 0, s)[1])
    a("s_nop 7"); a("s_nop 7")
    if o.get("prioA", 0): a(f"s_setprio {o['prioA']}")
    emit_items(a, phase(0, 0)); emit_items(a, phase(1, 0))
    def interval(s):
        return phase(0, 2*s-1) + phase(1, 2*s-1) + phase(0, 2*s) + phase(1, 2*s)
    nit = (32 - R + 1) // R
    iters = []
    for it in range(nit):
        items = []
        for s in range(1 + R*it, 1 + R + R*it): items += interval(s)
        iters.append(items)
    first = fix(iters[0], 0)
    its = [first]
    for it in range(1, nit):
        k = 0; r = []
        for x in iters[it]:
            if x[0] == "chk":
                r.append(("ins", f"s_cbranch_vccnz L_att_slow{k}")); r.append(("ins", f"L_att_ret{k}:")); k += 1
            else: r.append(x)
        its.append(r)
    tail = []
    for s in range(1 + R*nit, 32): tail += interval(s)
    tail += phase(0, 63) + phase(1, 63)
    its.append(fix(tail, 1))
    a(f"s_mov_b32 s29, {nit}")
    loop_emit(a, its, nit, "L_att_loop", 29)
    a("s_nop 1")
    emit_items(a, phase(0, 64, do_valu=False))
    if prof: prof_stamp(a, 2)
    a("s_nop 7"); a("s_nop 7")
    for X in range(2):
        L = RL + 4*X
        if rs == 3: a(f"v_add_f32 v{L}, v{L}, v{L+1}")
        if rs < 2:
            a(f"v_add_f32 v8, v{RLV+2*X}, v{RLV+2*X+1}")
            a("v_mov_b32 v9, v8")
            a("s_nop 1")
            a("v_permlane32_swap_b32 v8, v9")
            a("s_nop 1")
            a("v_add_f32 v8, v8, v9")
            a(f"v_add_f32 v{L}, v{L}, v8")
    a(f"v_mov_b32 v8, {f32(2.0**40)}")
    a(f"v_cmp_nle_f32 vcc, v{RL}, v8")
    a(f"v_cmp_nle_f32 s[64:65], v{RL+4}, v8")
    a("s_or_b64 vcc, vcc, s[64:65]")
    if o.get("forcefb"): a("s_branch L_att_fb")
    a("s_cbranch_vccnz L_att_fb")
    a.label("L_att_fin")
    for X in range(2):
        L = RL + 4*X; O = RO + 16*X
        a(f"v_rcp_f32 v{L}, v{L}")
        a("s_nop 0")
        for i in range(16): a(f"v_mul_f32 v{O+i}, v{O+i}, v{L}")
        for i in range(8):
            g4 = (i >> 2) + 2 * ((i >> 1) & 1)
            a(f"v_cvt_pk_bf16_f32 v{RP+8*X+i}, v{O+4*g4+2*(i&1)}, v{O+4*g4+2*(i&1)+1}")
        for s in range(2):
            a(f"buffer_store_dwordx4 {vr(RP+8*X+4*s,4)}, v6, s[4:7], s{61+X} offen offset:{512*s} sc1")
    if prof: prof_stamp(a, 3)
    a("v_mov_b32 v8, 1")
    for i in range(4): a(f"v_mov_b32 v{RM+i}, 1")
    a("v_lshlrev_b32 v7, 7, v1")
    a(f"v_lshlrev_b32 v9, {(2, 7, 11)[fv]}, v1")
    a(f"s_mov_b64 exec, {('0xffff', '0xff', '-1')[fv]}")
    a("s_waitcnt vmcnt(0)")
    if fv == 0: a("buffer_store_dword v8, v7, s[4:7], s63 offen sc1")
    else: a(f"buffer_store_dwordx4 {vr(RM,4)}, v2, s[4:7], s63 offen sc1")
    if fv == 2: a(f"buffer_store_dwordx4 {vr(RM,4)}, v2, s[4:7], s63 offen offset:1024 sc1")
    if prof: prof_stamp(a, 4); prof_real(a, 1); a("s_waitcnt lgkmcnt(0)")
    a("s_cmp_ge_u32 s28, 2")
    a("s_cbranch_scc1 L_att_end")
    a("s_mov_b32 exec_lo, -1")
    a("s_mov_b32 exec_hi, 0")
    a("s_mov_b32 s29, 0x40000")
    PD = o.get("pd", 1)
    for i in range(PD - 1):
        a(f"buffer_load_dword v{RS+i}, v9, s[4:7], s66 offen sc1")
        a(f"s_sleep {o.get('sleep', 1)}")
    a.label("L_poll")
    for i in range(PD):
        a(f"buffer_load_dword v{RS+(i+PD-1)%PD}, v9, s[4:7], s66 offen sc1")
        a(f"s_waitcnt vmcnt({PD-1})")
        a(f"v_cmp_ne_u32 vcc, 1, v{RS+i}")
        a("s_cbranch_vccz L_ready")
        a(f"s_sleep {o.get('sleep', 1)}")
    a("s_sub_u32 s29, s29, 1")
    a("s_cmp_lg_u32 s29, 0")
    a("s_cbranch_scc1 L_poll")
    a.label("L_ready")
    a(f"ds_write_b32 v{VSA}, v8 offset:16")
    if prof: prof_stamp(a, 4); prof_real(a, 1)
    a.label("L_att_end")
    if prof:
        a("s_mov_b64 exec, -1")
        prof_store(a, 5, 4, 27, 2, nwaves=8)
    a("s_endpgm")
    for k in slow:
        a.label(f"L_att_slow{k}")
        a(f"ds_read_b32 v{VFL}, v{VFA}")
        a("s_waitcnt lgkmcnt(0)")
        a(f"v_cmp_ge_u32 vcc, s37, v{VFL}")
        a(f"s_cbranch_vccnz L_att_slow{k}")
        a(f"s_branch L_att_ret{k}")

    a.label("L_att_fb")
    MX = RM; LS = RM + 2
    for r in range(RO, RO + 32): a(f"v_mov_b32 v{r}, 0")
    for X in range(2):
        a(f"v_mov_b32 v{MX+X}, {f32(-3.0e38)}")
        a(f"v_mov_b32 v{LS+X}, 0")
    a("s_mov_b32 s29, 64")
    a.label("L_att_fbloop")
    for i in range(2):
        a(f"buffer_load_dwordx4 {vr(RK+4*i,4)}, v2, s[4:7], s36 offen offset:{1024*i}")
    for i in range(2):
        a(f"buffer_load_dwordx4 {vr(RV+4*i,4)}, v2, s[4:7], s36 offen offset:{2048+1024*i}")
    a("s_add_u32 s36, s36, 4096")
    a("s_waitcnt vmcnt(0)")
    for X in range(2):
        for s in range(2): a(mS(X, 0, s, c0="0")[1])
    a("s_nop 7"); a("s_nop 7")
    for X in range(2):
        S = RS + 16*X; O = RO + 16*X; P = RP + 8*X
        a(f"v_max3_f32 v8, v{S}, v{S+1}, v{MX+X}")
        for i in range(2, 16, 2): a(f"v_max3_f32 v8, v8, v{S+i}, v{S+i+1}")
        a("v_mov_b32 v9, v8")
        a("s_nop 1")
        a("v_permlane32_swap_b32 v8, v9")
        a("s_nop 1")
        a("v_max_f32 v8, v8, v9")
        a(f"v_sub_f32 v9, v{MX+X}, v8")
        a("v_exp_f32 v9, v9")
        a(f"v_mov_b32 v{MX+X}, v8")
        for i in range(16): a(f"v_sub_f32 v{S+i}, v{S+i}, v8")
        for i in range(16): a(f"v_exp_f32 v{S+i}, v{S+i}")
        a(f"v_mul_f32 v{LS+X}, v{LS+X}, v9")
        for i in range(16): a(f"v_mul_f32 v{O+i}, v{O+i}, v9")
        for i in range(16): a(f"v_add_f32 v{LS+X}, v{LS+X}, v{S+i}")
        for i in range(8): a(f"v_cvt_pk_bf16_f32 v{P+i}, v{S+2*i}, v{S+2*i+1}")
        a("s_nop 1")
        for s in range(2): a(mPV(X, 0, s)[1])
    a("s_nop 7"); a("s_nop 7")
    a("s_sub_u32 s29, s29, 1")
    a("s_cmp_lg_u32 s29, 0")
    a("s_cbranch_scc1 L_att_fbloop")
    for X in range(2):
        a(f"v_mov_b32 v9, v{LS+X}")
        a("s_nop 1")
        a(f"v_permlane32_swap_b32 v{LS+X}, v9")
        a("s_nop 1")
        a(f"v_add_f32 v{RL+4*X}, v{LS+X}, v9")
    a("s_branch L_att_fin")

def merge_emit(a, seqs):
    ref = seqs[0]
    for q in seqs[1:]:
        assert len(q) == len(ref)
        for x, y in zip(q, ref):
            assert x[0] == y[0] and x[1] == y[1], (x, y)
    pend = {}
    for idx, x in enumerate(ref):
        if x[0] == "wait":
            ns = [q[idx][2] for q in seqs if q[idx][2] is not None]
            if ns: pend[x[1]] = min(ns + [pend.get(x[1], 99)])
        else:
            if pend: a("s_waitcnt " + " ".join(f"{k}({v})" for k, v in sorted(pend.items(), reverse=True)))
            pend = {}
            a(x[1])
    assert not pend

ACC = 16; FB = 48; HS = 80; XT = 240
def gemm_body(a, o, WB, SYNC):
    prof = o.get("prof", False)
    NWS = o.get("NWS", 7); NHS = 5; NH = 4 * NHS; NST = KT // 4
    vm = Counter(63); lg = Counter(15)
    a("s_bfe_u32 s57, s2, 0x20001")
    a("s_lshl_b32 s57, s57, 2")
    a("s_bfe_u32 s58, s2, 0x20003")
    a("s_add_u32 s57, s57, s58")
    a("s_and_b32 s58, s2, 1")
    a("s_lshl_b32 s58, s58, 3")
    a("s_lshr_b32 s59, s2, 5")
    a("s_add_u32 s58, s58, s59")
    a("v_lshlrev_b32 v2, 4, v1")
    a(f"s_mul_i32 s36, s57, {KT*8192}")
    a(f"s_add_u32 s36, s36, {WS_H:#x}")
    a("s_lshl_b32 s34, s28, 11")
    a("s_lshl_b32 s33, s28, 16")
    a("s_lshl_b32 s60, s58, 7")
    a("s_add_u32 s33, s33, s60")
    a("s_mov_b32 s61, s33")
    a("s_lshl_b32 s42, s28, 12")
    a(f"s_add_u32 s42, s42, {WB}")
    a(f"s_add_u32 s43, s42, {NWS*16384}")
    a("s_mov_b32 s40, s42")
    a("v_lshrrev_b32 v20, 3, v1")
    a("v_and_b32 v21, 6, v20")
    a("v_and_b32 v22, 7, v1")
    a("v_xor_b32 v21, v21, v22")
    a("v_lshlrev_b32 v21, 4, v21")
    a("v_lshl_add_u32 v4, v20, 11, v21")
    for q in range(1, 4): a(f"v_add_u32 v{4+q}, {16384*q - 1024*q}, v4")
    a("v_lshrrev_b32 v20, 2, v1")
    a("v_and_b32 v21, 3, v1")
    a("v_lshlrev_b32 v21, 3, v21")
    a("v_lshl_add_u32 v21, v20, 7, v21")
    a(f"v_add_u32 v21, {WB}, v21")
    a("v_bfe_u32 v20, v1, 3, 2")
    for nb in range(4):
        a(f"v_xor_b32 v22, {nb}, v20")
        a(f"v_lshl_add_u32 v{8+nb}, v22, 5, v21")
    a("v_and_b32 v3, 15, v1")
    a("v_lshlrev_b32 v3, 11, v3")
    a("v_bfe_u32 v20, v1, 4, 1")
    a("v_lshl_add_u32 v3, v20, 5, v3")
    a("v_lshrrev_b32 v20, 5, v1")
    a("v_lshl_add_u32 v3, v20, 4, v3")
    a("v_and_b32 v0, 3, v1")
    a("v_lshlrev_b32 v0, 2, v0")
    a(f"v_add_u32 v0, {SYNC + 32}, v0")
    a("s_lshl_b32 s59, s28, 2")
    a(f"s_add_u32 s59, s59, {SYNC + 32}")
    a("v_mov_b32 v14, s59")
    a("v_mov_b32 v13, 0")
    a("s_lshr_b32 s59, s28, 1")
    a("s_lshl_b32 s59, s59, 2")
    a(f"s_add_u32 s59, s59, {SYNC + 16}")
    a("v_mov_b32 v12, s59")
    a("s_mov_b32 s37, 0")
    a("s_mov_b32 s38, 0")
    a("s_mov_b32 s46, 16384")
    a(f"s_mov_b32 s47, {-(NWS-1)*16384}")
    a("s_lshl_b32 s64, s57, 2")
    a("s_add_u32 s64, s64, s28")
    a("s_lshl_b32 s64, s64, 16")
    a("s_add_u32 s64, s64, s60")
    a("s_add_u32 s65, s64, 32768")
    a("s_waitcnt lgkmcnt(0)")
    srd(a, 4, 50, WS_END)
    srd(a, 24, 50, KT * 8192)
    a("s_add_u32 s24, s24, s36")
    a("s_addc_u32 s25, s25, 0")
    srd(a, 8, 48, 3584 * 2048)
    srd(a, 16, 54, 2048 * 2048)
    srd(a, 20, 44, 2048 * 2048)
    def wm0():
        return ["s_mov_b32 m0, s40", "s_add_u32 s40, s40, 16384"]
    def wq(st, q):
        vm.issue(("W", st))
        r = [f"buffer_load_dwordx4 v{4+q}, s[8:11], s33 offen offset:{1024*q} lds"]
        if q == 1: r += ["s_cmp_eq_u32 s40, s43", "s_cselect_b32 s40, s42, s40"]
        if q == 3: r.append(f"s_add_u32 s33, s33, {4*65536}")
        return r
    def hload(u, tt):
        vm.issue(("H", u))
        r = [f"buffer_load_dwordx4 {vr(HS+8*(u % NH)+4*tt,4)}, v2, s[24:27], s34 offen offset:{1024*tt}"]
        if tt == 1: r.append("s_add_u32 s34, s34, 8192")
        return r
    def wread(u, nb, rd_):
        lg.issue(("A", u, nb))
        return f"ds_read_b64_tr_b16 {vr(FB+16*(u&1)+4*nb+2*rd_,2)}, v{8+nb} offset:{(u&3)*4096 + rd_*2048}"
    a("s_barrier")
    def wall(st):
        for l in wm0(): a(l)
        for q in range(4):
            for l in wq(st, q): a(l)
    DW = o.get("DW", 3); DH = o.get("DH", 3); DT = o.get("DT", 10)
    wall(0)
    for q in range(4):
        vm.issue("X")
        a(f"buffer_load_dwordx4 {vr(XT+4*q,4)}, v3, s[16:19], s{64+(q>>1)} offen offset:{64*(q&1)}")
    nw = [1]
    for j in range(-max(DW, DH), 0):
        if j + DW >= 1: wall(j + DW); nw[0] += 1
        if j + DH >= 0:
            for u in range(4*(j + DH), 4*(j + DH) + 4):
                for tt in range(2):
                    for l in hload(u, tt): a(l)
    assert nw[0] == DW
    a(f"s_waitcnt vmcnt({vm.need({('W', 0)})})")
    a("v_add_u32 v13, 1, v13")
    a("ds_write_b32 v14, v13")
    a.label("L_gw0")
    a("ds_read_b32 v15, v0")
    a("s_waitcnt lgkmcnt(0)")
    a("v_cmp_ge_u32 vcc, s37, v15")
    a("s_cbranch_vccnz L_gw0")
    a("s_add_u32 s37, s37, 1")
    for u in range(2):
        for nb in range(4):
            for rd_ in range(2):
                if (u, nb, rd_) != (1, 3, 1): a(wread(u, nb, rd_))
    n = vm.need({'X'})
    if n is not None: a(f"s_waitcnt vmcnt({n})")
    for q in range(4):
        for i in range(2): a(f"v_permlane16_swap_b32 v{XT+4*q+i}, v{XT+4*q+2+i}")
    a("s_nop 1")
    for j in range(16):
        a(f"v_lshlrev_b32 v{ACC+2*j}, 16, v{XT+j}")
        a(f"v_and_b32 v{ACC+2*j+1}, 0xffff0000, v{XT+j}")
    a("s_mov_b32 s29, 0")
    if prof and not o.get("tr"): prof_stamp(a, 1)
    if o.get("prioG", 0): a(f"s_setprio {o['prioG']}")
    HB = o.get("HB", 1)
    FLI = 28 - HB
    P = o.get("P", 25)
    assert P + DH <= 28 and P + DW <= 28 and FLI >= P and DW <= NWS - 2
    sp = o.get("sigpos", (0, 3)); fp = o.get("frdpos", (1, 3)); cp = (2, 1)
    duty = o.get("duty", 1)
    nx = [8 * DH]
    labs = []
    def stage(i):
        items = []
        k = i % NHS if i < P else i
        if k not in labs and i + 1 < NST: labs.append(k)
        def I(ls):
            for l in ls: items.append(("ins", l))
        last = i + 1 == NST
        if i < P and 0 < duty < NHS:
            if k == 0: I(["s_setprio 1"])
            if k == duty: I(["s_setprio 0"])
        wg = None
        for t in range(4):
            u = 4*i + t
            if i < P: wok = t == 0
            else: wok = nw[0] < NST and nw[0] <= i + NWS - (1 if t == 3 else 2) and (i < FLI or t == 3)
            for m in range(8):
                nb, tt = m >> 1, m & 1
                if m == 0: items.append(("wait", "vmcnt", vm.need({("H", u)})))
                if tt == 0: items.append(("wait", "lgkmcnt", lg.need({("A", u, nb)})))
                c = vr(ACC + 16*tt + 4*nb, 4)
                I([f"v_mfma_f32_16x16x32_bf16 {c}, {vr(FB+16*(u&1)+4*nb,4)}, {vr(HS+8*(u % NH)+4*tt,4)}, {c}"])
                if (t, m) == cp and not last:
                    items.append(("wait", "lgkmcnt", lg.need({("F", i)})))
                    I(["v_cmp_ge_u32 vcc, s37, v15", f"s_cbranch_vccnz L_dn_slow{k}", f"L_dn_ret{k}:"])
                if (i, t, m) == (FLI, 0, 0): I(["s_branch L_flag", "L_flag_ret:"])
                if tt == 1:
                    if u + 2 < KT: I([wread(u + 2, nb, 0)])
                else:
                    pu, pn = (u, nb - 1) if nb else (u - 1, 3)
                    if pu + 2 < KT: I([wread(pu + 2, pn, 1)])
                if not last:
                    if (t == 1 and tt == 0 and nb): I([f"v_add_u32 v{8+nb-1}, s39, v{8+nb-1}"])
                    if (t, m) == (2, 0): I([f"v_add_u32 v11, s39, v11"])
                    if (t, m) == (0, 6): I(["s_add_u32 s38, s38, 1", f"s_cmp_eq_u32 s38, {NWS}", "s_cselect_b32 s39, s47, s46", "s_cselect_b32 s38, 0, s38"])
                    if (t, m) == (sp[0], sp[1] - 1): I(["v_add_u32 v13, 1, v13"])
                    if (t, m) == tuple(sp):
                        items.append(("wait", "vmcnt", vm.need({("W", i + 1)})))
                        lg.issue(("SG", i))
                        I(["ds_write_b32 v14, v13"])
                    if (t, m) == tuple(fp):
                        lg.issue(("F", i))
                        I(["ds_read_b32 v15, v0"])
                    if (t, m) == (0, 2): I(["s_add_u32 s37, s37, 1"])
                if wok:
                    if m == 1:
                        if nw[0] == 28: I(["s_mov_b32 s8, s52", "s_mov_b32 s9, s53", f"s_mov_b32 s10, {1024*2048}", "s_mov_b32 s33, s61"])
                        I(wm0())
                    if 2 <= m < 6: I(wq(nw[0], m - 2))
                    if m == 5: nw[0] += 1
                late = m - 6 if m >= 6 else -1
                free = 2 * (u + NH) + late
                if i < P: lim = 2 * (u + 4 * DH) + late
                elif (i, t, m) < (FLI, 0, 0): lim = 2 * 112 - 1
                else: lim = min(2 * KT - 1, max(2 * (u + DT) + late, 2 * (112 + DT) - 1))
                for rep in range(o.get("burst", 1) if i >= FLI else 1):
                    if nx[0] <= min(free, lim):
                        I(hload(nx[0] >> 1, nx[0] & 1)); nx[0] += 1
        return items
    st = [stage(i) for i in range(NST)]
    a("s_sub_u32 s37, s37, 1")
    a.label("L_dn_loop")
    for k in range(NHS):
        merge_emit(a, st[k:P:NHS])
        if k == (P - 1) % NHS:
            a(f"s_cmp_eq_u32 s29, {(P - 1) // NHS}")
            a("s_cbranch_scc1 L_dn_tail")
    a("s_add_u32 s29, s29, 1")
    a("s_branch L_dn_loop")
    for k in labs:
        a.label(f"L_dn_slow{k}")
        a("ds_read_b32 v15, v0")
        a("s_waitcnt lgkmcnt(0)")
        a("v_cmp_ge_u32 vcc, s37, v15")
        a(f"s_cbranch_vccnz L_dn_slow{k}")
        a(f"s_branch L_dn_ret{k}")
    a.label("L_flag")
    if prof and not o.get("tr"): prof_stamp(a, 2)
    a.label("L_flagl")
    a("ds_read_b32 v1, v12")
    a("s_waitcnt lgkmcnt(0)")
    a("v_readfirstlane_b32 s59, v1")
    a("s_cmp_lg_u32 s59, 0")
    a("s_cbranch_scc1 L_flagd")
    a(f"s_sleep {o.get('gsleep', 1)}")
    a("s_branch L_flagl")
    a.label("L_flagd")
    if prof: prof_stamp(a, 1 if o.get("tr") else 3); a("s_waitcnt lgkmcnt(0)")
    if o.get("prioW", 0): a(f"s_setprio {o['prioW']}")
    a("s_branch L_flag_ret")
    a.label("L_dn_tail")
    if "prioT" in o: a(f"s_setprio {o['prioT']}")
    for i in range(P, NST):
        if i in o.get("tr", []): a(f"s_memtime s[{84+2*o['tr'].index(i)}:{85+2*o['tr'].index(i)}]")
        merge_emit(a, [st[i]])
    if prof and not o.get("tr"): prof_stamp(a, 4)
    if prof and len(o.get("tr", [])) == 3: prof_stamp(a, 5)
    a("s_nop 7")
    for q in range(4):
        for i in range(4):
            a(f"v_cvt_pk_bf16_f32 v{XT+4*q+i}, v{ACC+8*q+2*i}, v{ACC+8*q+2*i+1}")
    a("s_nop 0")
    for q in range(4):
        for i in range(2): a(f"v_permlane16_swap_b32 v{XT+4*q+i}, v{XT+4*q+2+i}")
    a("s_nop 1")
    for q in range(4):
        a(f"buffer_store_dwordx4 {vr(XT+4*q,4)}, v3, s[20:23], s{64+(q>>1)} offen offset:{64*(q&1)}{o.get('osc', '')}")
    if prof:
        a("s_waitcnt vmcnt(0)")
        if not o.get("tr"): prof_stamp(a, 5)
        prof_real(a, 1)
        prof_store(a, 6, 4, 79, 2, nwaves=8)
    a("s_endpgm")

def gen_s3k(a, name, o):
    R = o.get("R", 5)
    WB = KVBASE + R * KSLOT
    SYNC = WB + o.get("NWS", 7) * 16384
    kernel_begin(a, name)
    a("s_cmp_ge_u32 s2, 256")
    a("s_cbranch_scc1 L_s3_end")
    if o.get("prof"): prof_stamp(a, 0); prof_real(a, 0)
    a("s_load_dwordx2 s[50:51], s[0:1], 72")
    a("s_load_dwordx2 s[48:49], s[0:1], 48")
    a("s_load_dwordx2 s[52:53], s[0:1], 16")
    a("s_load_dwordx2 s[54:55], s[0:1], 0")
    a("s_load_dwordx2 s[44:45], s[0:1], 56")
    a("v_lshrrev_b32 v15, 6, v0")
    a("v_and_b32 v1, 63, v0")
    a("v_readfirstlane_b32 s27, v15")
    a("s_and_b32 s28, s27, 3")
    if o.get("prof"): a("s_mov_b32 s79, s27")
    a("s_cmp_ge_u32 s27, 4")
    a("s_cbranch_scc1 L_s3_down")
    a("s_and_b32 s56, s2, 7")
    a("s_lshl_b32 s56, s56, 2")
    a("s_bfe_u32 s57, s2, 0x20003")
    a("s_add_u32 s56, s56, s57")
    a("s_lshr_b32 s57, s2, 5")
    att_body(a, o, SYNC)
    a.label("L_s3_down")
    if o.get("nodown"): a("s_endpgm")
    gemm_body(a, o, WB, SYNC)
    a.label("L_s3_end")
    a("s_endpgm")
    return dict(name=name, grid=256, block=512, lds=SYNC + 64, vgpr=256, accum=256)
```

```python
import sys
from gen_common import *
from gen_ln import gen_ln
from gen_g1 import gen_g1

def build(path, opts=None):
    opts = opts or {}
    if opts.get("prof"):
        for k in ("ln", "g1", "s3", "wo"): opts.setdefault(k, {})["prof"] = True
    a = Asm()
    ks = []
    ks.append(gen_g1(a, "g1_kernel", **opts.get("g1", {})))
    if opts.get("old"):
        from gen_att import gen_stage3
        ks += gen_stage3(a, opts)
    else:
        from gen_s3k import gen_s3k
        ks.append(gen_s3k(a, "s3_kernel", opts.get("s3", {})))
    ref = open(f"cdna_kernels/{NAME}.s.ref").read().splitlines()
    hdr = [l for l in ref if l.startswith(";") and "@launch" not in l and "Override launch" not in l and "grid=ceil" not in l]
    out = "\n".join(hdr) + "\n"
    for k in ks:
        out += f"; @launch kernel={k['name']} grid=({k['grid']},1,1) block=({k['block']},1,1) lds={k['lds']}\n"
    out += '.amdgcn_target "amdgcn-amd-amdhsa--gfx950"\n.text\n'
    out += a.text()
    out += '.section .rodata,"a"\n'
    seen = set()
    for k in ks:
        if k["name"] in seen: continue
        seen.add(k["name"])
        out += kernel_desc(k["name"], k["vgpr"], k["accum"])
    open(path, "w").write(out)

if __name__ == "__main__":
    import json
    path = sys.argv[1] if len(sys.argv) > 1 else f"cdna_kernels/{NAME}.s"
    opts = json.loads(sys.argv[2]) if len(sys.argv) > 2 else {}
    build(path, opts)
```

```python
from gen_common import *

SLOT = 20480
XBASE = 4 * SLOT
CBASE = XBASE + 65536
G1_LDS = CBASE + 1280 + 2048
WS_ST = 0
WS_CS = 0x10000
ONES = 28; ST = 20; CSA = 208; CSP = 228
LOG2E = 1.4426950408889634

def loop_emit(a, iters, nloop, label, cnt, extra=None, tail=None):
    ref = iters[0]
    for it in range(1, nloop):
        assert len(iters[it]) == len(ref), (it, len(iters[it]), len(ref))
        for x, y in zip(iters[it], ref):
            assert x[0] == y[0] and (x[0] == "wait" or x[1] == y[1]), (it, x, y)
    a.label(label)
    for idx, x in enumerate(ref):
        if x[0] == "ins":
            a(x[1])
        else:
            ns = [iters[it][idx][2] for it in range(nloop) if iters[it][idx][2] is not None]
            if ns:
                a(f"s_waitcnt {x[1]}({min(ns)})")
    if extra: extra()
    a(f"s_sub_u32 s{cnt}, s{cnt}, 1")
    a(f"s_cmp_lg_u32 s{cnt}, 0")
    a(f"s_cbranch_scc1 {label}")
    if tail: a.label(tail)
    for it in range(nloop, len(iters)):
        for x in iters[it]:
            if x[0] == "ins": a(x[1])
            elif x[2] is not None: a(f"s_waitcnt {x[1]}({x[2]})")

def gen_g1(a, name, D=2, lg_cap=8, bar_pos=4, prof=False, hack='', nslot=6, sc=' sc1', fv=1, pf=0):
    kernel_begin(a, name)
    a("s_cmp_ge_u32 s2, 256")
    a("s_cbranch_scc1 L_g1_end")
    if prof: prof_stamp(a, 0); prof_real(a, 0)
    if pf:
        a("s_getpc_b64 s[36:37]")
        a.label("L_g1_pc")
        a("s_and_b32 s56, s2, 31")
        a("s_cmp_ge_u32 s56, 28")
        a("s_cselect_b32 s38, L_g1_T2-L_g1_pc, 0")
        a("s_add_u32 s36, s36, s38")
        a("s_addc_u32 s37, s37, 0")
        a("v_lshlrev_b32 v76, 7, v0")
        a("v_mov_b32 v77, s37")
        a("v_add_co_u32 v76, vcc, s36, v76")
        a("v_addc_co_u32 v77, vcc, 0, v77, vcc")
        if pf & 1: a("global_load_dword v78, v[76:77], off")
    a("s_load_dwordx2 s[48:49], s[0:1], 8")
    a("s_load_dwordx4 s[52:55], s[0:1], 32")
    a("s_load_dwordx4 s[60:63], s[0:1], 64")
    a("s_load_dwordx2 s[50:51], s[0:1], 0")
    a("v_lshrrev_b32 v15, 6, v0")
    a("v_and_b32 v1, 63, v0")
    a("v_readfirstlane_b32 s28, v15")
    a("s_and_b32 s56, s2, 31")
    a("s_lshr_b32 s57, s2, 5")
    a("v_lshrrev_b32 v15, 3, v1")
    a("v_and_b32 v16, 7, v1")
    a("v_lshrrev_b32 v17, 1, v15")
    a("v_xor_b32 v18, v16, v17")
    a("v_lshlrev_b32 v18, 4, v18")
    a("v_lshl_add_u32 v2, v15, 11, v18")
    a("v_xor_b32 v3, 64, v2")
    a("v_lshlrev_b32 v17, 1, v17")
    a("v_xor_b32 v18, v16, v17")
    a("v_lshlrev_b32 v18, 4, v18")
    a("v_lshrrev_b32 v19, 2, v15")
    a("v_and_b32 v20, 3, v15")
    a("v_lshl_add_u32 v19, v19, 3, v20")
    a("s_lshr_b32 s58, s28, 1")
    a("s_lshl_b32 s58, s58, 4")
    a("s_and_b32 s59, s28, 1")
    a("s_lshl_b32 s59, s59, 2")
    a("s_add_u32 s58, s58, s59")
    a("v_add_u32 v19, s58, v19")
    a("v_mul_u32_u24 v20, 6144, v19")
    a("v_add_u32 v20, v20, v18")
    a("s_lshl_b32 s58, s56, 7")
    a("v_add_u32 v4, s58, v20")
    a("v_mul_u32_u24 v21, 7168, v19")
    a("v_add_u32 v21, v21, v18")
    a("s_lshl_b32 s58, s56, 8")
    a("v_add_u32 v5, s58, v21")
    a("s_lshl_b32 s58, s56, 9")
    a(f"s_sub_u32 s58, s58, {28*512-4096}")
    a("v_add_u32 v6, s58, v20")
    a("v_lshrrev_b32 v18, 5, v1")
    a("v_bfe_u32 v19, v1, 2, 3")
    a("v_and_b32 v20, 3, v1")
    a("v_lshlrev_b32 v21, 11, v18")
    a("v_lshl_add_u32 v21, v19, 7, v21")
    a("v_lshl_add_u32 v21, v20, 3, v21")
    a("v_lshrrev_b32 v19, 1, v19")
    for c in range(4):
        a(f"v_xor_b32 v20, {c}, v19")
        a(f"v_lshl_add_u32 v{8+c}, v20, 5, v21")
        a(f"v_add_u32 v{12+c}, {2*SLOT}, v{8+c}")
    a("s_lshl_b32 s42, s28, 14")
    a(f"s_add_u32 s42, s42, {XBASE}")
    a("v_and_b32 v20, 15, v1")
    a("v_lshrrev_b32 v21, 1, v20")
    a("v_lshrrev_b32 v18, 4, v1")
    a("v_xor_b32 v21, v21, v18")
    a("v_lshlrev_b32 v20, 7, v20")
    a("v_add_u32 v20, s42, v20")
    a("v_lshl_add_u32 v16, v21, 4, v20")
    a("v_xor_b32 v17, 64, v16")
    a("s_mov_b32 s30, 0")
    a("s_mov_b32 s33, 0")
    a("s_lshl_b32 s41, s28, 10")
    a("s_lshl_b32 s34, s57, 19")
    a("s_lshl_b32 s58, s28, 17")
    a("s_add_u32 s34, s34, s58")
    a("s_lshl_b32 s58, s2, 3")
    a("s_lshl_b32 s59, s28, 1")
    a("s_add_u32 s58, s58, s59")
    a("s_lshl_b32 s79, s58, 3")
    a("s_lshl_b32 s58, s58, 11")
    a("v_and_b32 v20, 31, v1")
    a("v_lshrrev_b32 v21, 5, v1")
    a("v_lshlrev_b32 v20, 4, v20")
    a("v_lshl_add_u32 v20, v21, 11, v20")
    a("s_waitcnt lgkmcnt(0)")
    srd(a, 20, 50, 2048 * 2048)
    for q in range(4):
        a(f"buffer_load_dwordx4 v[{32+4*q}:{35+4*q}], v20, s[20:23], s58 offen offset:{512*q}")
    srd(a, 4, 62, WS_END)
    srd(a, 24, 60, 256)
    srd(a, 8, 48, 1024 * 6144)
    srd(a, 12, 52, 1024 * 7168)
    srd(a, 16, 54, 1024 * 7168)
    a(f"s_lshl_b32 s58, s2, {(8, 9, 13)[fv]}")
    a(f"s_add_u32 s58, s58, {WS_FLAG:#x}")
    a("v_mov_b32 v20, 0")
    a(f"v_lshlrev_b32 v21, {(2, 3, 7)[fv]}, v1")
    a("buffer_store_dword v20, v21, s[4:7], s58 offen")
    a("s_cmp_ge_u32 s56, 28")
    a("s_cbranch_scc1 L_g1_T2")
    body(a, 1, D, lg_cap, bar_pos, prof, hack, nslot, sc, pf)
    a.label("L_g1_T2")
    body(a, 2, D, lg_cap, bar_pos, prof, hack, nslot, sc, pf)
    a.label("L_g1_end")
    a("s_endpgm")
    return dict(name=name, grid=256, block=256, lds=G1_LDS, vgpr=256+240, accum=256)

AF = 96; BF = 176
def accreg(nb, tb):
    L, c = nb >> 2, nb & 3
    if L == 0:
        return ("a", (((c >> 1) * 4 + tb) * 2 + (c & 1)) * 4)
    e = ((L - 1) * 4 + c) >> 1
    idx = ((e * 4 + tb) * 2 + (c & 1)) * 4
    if idx < 224: return ("v", 32 + idx)
    return ("a", 64 + idx - 224)

def body(a, typ, D, lg_cap, bar_pos, prof, hack, nslot, sc, pf):
    vm = Counter(63)
    lg = Counter(15)
    def w_dma(stage, n):
        slot = stage % 4
        if n == 0: voff, sr_, so, off = 4, 8, 33, 0
        elif typ == 1: voff, sr_, so, off = 5, (12 if n < 3 else 16), 30, ((n - 1) & 1) * 128
        else: voff, sr_, so, off = 6, 8, 33, (n - 1) * 128
        o = f" offset:{off}" if off else ""
        vm.issue(("W", stage))
        g1 = [f"s_add_u32 m0, s41, {slot*SLOT + n*4096 - off}"]
        g2 = [f"buffer_load_dwordx4 v{voff}, s[{sr_}:{sr_+3}], s{so} offen{o} lds"]
        if n == 4:
            g2.append(f"s_add_u32 s33, s33, {32*6144}")
            if typ == 1: g2.append(f"s_add_u32 s30, s30, {32*7168}")
        return [g1, g2]
    def x_dma(tile, n):
        slot = tile % 2
        vm.issue(("X", tile))
        g1 = [f"s_add_u32 m0, s42, {slot*8192 + n*1024}", f"s_add_u32 s35, s34, {n*16384}"]
        g2 = [f"buffer_load_dwordx4 v{2+(n&1)}, s[20:23], s35 offen lds"]
        if n == 7: g2.append("s_add_u32 s34, s34, 128")
        return [g1, g2]
    def a_read(step, nb, rd):
        slot = step % 4
        L, c = nb >> 2, nb & 3
        lg.issue(("A", step, nb))
        return f"ds_read_b64_tr_b16 {ar(AF+4*nb+2*rd, 2)}, v{8 + c + 4*(slot>>1)} offset:{(slot&1)*SLOT + L*4096 + rd*1024}"
    def b_read(step, tb):
        tile = step >> 1
        lg.issue(("B", step, tb))
        return f"ds_read_b128 {ar(BF+16*(step&1)+4*tb, 4)}, v{16+(step&1)} offset:{(tile&1)*8192 + tb*2048}"

    NS = 32
    sched = {i: [] for i in range(-8, NS)}
    for s in range(-4, NS):
        st = s + D
        if 0 <= st < NS:
            for n in range(5):
                sched[s-1].append(("W", st, n))
    for t in range(-3, 16):
        tl = t + 2
        if 0 <= tl < 16:
            for n in range(8):
                sched[2*t+1 + (0 if n < 5 else 1)].append(("X", tl, n))
    pro = [e for i in range(-8, 0) for e in sched[i]]
    pro.sort(key=lambda e: (e[1] if e[0] == "W" else e[1]*2 - 0.5, e[2]))
    for q in range(4): vm.issue("SR")
    vm.issue("FL")
    base = "L_g1_pc" if typ == 1 else "L_g1_T2"
    if pf & 6:
        a(f"s_mov_b32 s38, L_g1_{'tail' if pf & 2 else 'epi'}{typ}-{base}")
        a("v_add_co_u32 v24, vcc, s38, v76")
        a("v_addc_co_u32 v25, vcc, 0, v77, vcc")
    if pf & 8:
        a("s_mov_b32 s38, L_s3_end-s3_kernel")
        a("v_lshlrev_b32 v22, 7, v0")
        a("v_min_u32 v22, s38, v22")
        a(f"s_add_u32 s38, s36, s3_kernel-{base}")
        a("s_addc_u32 s39, s37, 0")
        a("v_mov_b32 v23, s39")
        a("v_add_co_u32 v22, vcc, s38, v22")
        a("v_addc_co_u32 v23, vcc, 0, v23, vcc")
    for e in pro:
        g1, g2 = (w_dma if e[0] == "W" else x_dma)(e[1], e[2])
        for l in g1: a(l)
        if len(g1) == 1: a("s_nop 0")
        for l in g2: a(l)
    for r in range(80, 256):
        a(f"v_mov_b32 v{r}, 0")
    for r in list(range(96)) + list(range(CSA, CSA + 20)):
        a(f"v_accvgpr_write_b32 a{r}, 0")
    for r in range(4): a(f"v_mov_b32 v{ONES+r}, 0x3f803f80")
    a("v_mov_b32 v7, 1")
    a("v_mov_b32 v19, 1.0")
    a("s_sub_u32 s75, 7, s57")
    a("s_sub_u32 s76, 6, s57")
    a(f"s_cmp_ge_u32 s57, {nslot}")
    a("s_cselect_b32 s75, -1, s75")
    a("s_cselect_b32 s76, 7, s76")
    a("s_cmp_lg_u32 s28, 0")
    a("s_cselect_b32 s76, -1, s76")
    a("s_cmp_eq_u32 s75, 7")
    a("s_cselect_b32 s74, 1, 0")
    a("s_lshl_b32 s78, s56, 3")
    a("s_add_u32 s78, s78, s57")
    a("s_mul_i32 s78, s78, 1280")
    a("s_mul_i32 s77, s28, 320")
    a("s_add_u32 s78, s78, s77")
    a(f"s_add_u32 s78, s78, {WS_CS:#x}")
    a("s_mov_b32 s77, 0xffff0000")
    a(f"s_waitcnt vmcnt({vm.need({'SR'})})")
    for i in range(16):
        a(f"v_lshlrev_b32 v{48+2*i}, 16, v{32+i}")
        a(f"v_and_b32 v{49+2*i}, s77, v{32+i}")
    def half_sum(v, t):
        for c in ("quad_perm:[1,0,3,2]", "quad_perm:[2,3,0,1]", "row_half_mirror", "row_mirror"):
            a("s_nop 1")
            a(f"v_add_f32_dpp v{v}, v{v}, v{v} {c} row_mask:0xf bank_mask:0xf")
        a(f"v_mov_b32 v{t}, v{v}")
        a("s_nop 1")
        a(f"v_permlane16_swap_b32 v{v}, v{t}")
        a("s_nop 1")
        a(f"v_add_f32 v{v}, v{v}, v{t}")
    a("v_pk_add_f32 v[32:33], v[48:49], v[50:51]")
    a("v_pk_add_f32 v[34:35], v[52:53], v[54:55]")
    for i in range(4, 16):
        d = 32 + 2*(i & 1)
        a(f"v_pk_add_f32 v[{d}:{d+1}], v[{d}:{d+1}], v[{48+2*i}:{49+2*i}]")
    a("v_pk_add_f32 v[32:33], v[32:33], v[34:35]")
    a("v_add_f32 v32, v32, v33")
    half_sum(32, 33)
    a(f"v_mul_f32 v32, {f32(-1.0/1024)}, v32")
    for i in range(16):
        a(f"v_pk_add_f32 v[{48+2*i}:{49+2*i}], v[{48+2*i}:{49+2*i}], v[32:33] op_sel_hi:[1,0]")
    a("v_pk_mul_f32 v[34:35], v[48:49], v[48:49]")
    a("v_pk_mul_f32 v[36:37], v[50:51], v[50:51]")
    for i in range(2, 16):
        d = 34 + 2*(i & 1)
        a(f"v_pk_fma_f32 v[{d}:{d+1}], v[{48+2*i}:{49+2*i}], v[{48+2*i}:{49+2*i}], v[{d}:{d+1}]")
    a("v_pk_add_f32 v[34:35], v[34:35], v[36:37]")
    a("v_add_f32 v34, v34, v35")
    half_sum(34, 35)
    a(f"v_mul_f32 v34, {f32(1.0/1024)}, v34")
    a("v_cvt_pk_bf16_f32 v33, v32, v34")
    a("v_lshlrev_b32 v20, 16, v33")
    a("v_and_b32 v34, s77, v33")
    a(f"v_add_f32 v34, {f32(1e-5)}, v34")
    a("v_cvt_pk_bf16_f32 v34, v34, v34")
    a("v_and_b32 v34, s77, v34")
    a("v_sqrt_f32 v34, v34")
    a("v_lshrrev_b32 v18, 5, v1")
    a("v_cvt_pk_bf16_f32 v34, v34, v34")
    a("v_and_b32 v34, s77, v34")
    a("v_rcp_f32 v21, v34")
    a("v_lshlrev_b32 v18, 3, v18")
    a("s_mov_b32 exec_lo, 1")
    a("s_mov_b32 exec_hi, 1")
    vm.issue("SS")
    a(f"buffer_store_dwordx2 v[20:21], v18, s[4:7], s79 offen offset:{WS_ST} sc1")
    a("s_mov_b64 exec, -1")
    for r in range(32, 80):
        a(f"v_mov_b32 v{r}, 0")
    n = vm.need({("W", 0), ("X", 0)})
    a(f"s_waitcnt vmcnt({n})")
    a("s_barrier")
    for tb in range(4): a(b_read(0, tb))
    for nb in range(20):
        for rd in range(2): a(a_read(0, nb, rd))
    a("s_mov_b32 s29, 7")
    if prof: a("s_waitcnt lgkmcnt(0)"); prof_stamp(a, 1); a("s_waitcnt lgkmcnt(0)")

    hooks = {}
    def hook(i, m, f): hooks.setdefault((i, m), []).append(f)
    def ins(*ls): return lambda: [("ins", l) for l in ls]
    def h_poll():
        vm.issue("PL")
        return [("ins", "buffer_load_dword v18, off, s[24:27], 0 sc1")]
    hook(28, 79, h_poll)
    def h_pf(r):
        def f():
            vm.issue("PF")
            return [("ins", f"global_load_dword v27, v[{r}:{r+1}], off")]
        return f
    if pf & 2:
        for i in range(0, 32, 4): hook(i, 7, h_pf(24))
    if pf & 4: hook(28, 7, h_pf(24))
    if pf & 8: hook(28, 11, h_pf(22))
    hook(29, 40, ins("v_and_b32 v4, 15, v1", "v_lshrrev_b32 v3, 4, v1"))
    hook(29, 42, ins("v_mul_u32_u24 v2, 1280, v3", f"v_cmp_gt_u32 vcc, {nslot-4}, v3"))
    hook(29, 44, ins("v_lshl_add_u32 v2, v4, 2, v2", "v_lshlrev_b32 v4, 3, v4"))
    hook(29, 46, ins("v_add_u32 v3, 5120, v2", "v_mov_b32 v5, 0x40000000"))
    hook(29, 48, ins("v_cndmask_b32 v3, v5, v3, vcc", "s_mul_i32 s78, s56, 10240"))
    hook(29, 50, ins("s_mul_i32 s77, s28, 320", "s_add_u32 s78, s78, s77", f"s_add_u32 s78, s78, {WS_CS:#x}"))
    hook(29, 52, ins("s_lshl_b32 s79, s57, 11", "s_lshl_b32 s77, s28, 9", "s_add_u32 s79, s79, s77"))
    def h_chk():
        return [("wait", "vmcnt", vm.need({"PL"})), ("ins", "v_readfirstlane_b32 s77, v18"),
                ("ins", "s_cmp_lt_u32 s77, 256"), ("ins", f"s_cbranch_scc1 L_slow{typ}"), ("ins", f"L_slowr{typ}:")]
    PC = 62
    hook(29, PC, h_chk)
    def h_ld(q):
        def f():
            vm.issue("HL")
            if q < 10: return [("ins", f"buffer_load_dword a{CSP+q}, v{2+(q&1)}, s[4:7], s78 offen offset:{64*(q>>1)} sc1")]
            tb = q - 10
            return [("ins", f"buffer_load_dwordx2 v[{ST+2*tb}:{ST+2*tb+1}], v4, s[4:7], s79 offen offset:{WS_ST+128*tb} sc1")]
        return f
    for q in range(14): hook(29, PC + 1 + q, h_ld(q))
    hook(31, 30, lambda: [("wait", "vmcnt", vm.need({"HL"}))])
    for q in range(10):
        c_ = ar(CSA + 4*(q >> 1), 4)
        hook(31, 30 + q, ins(f"v_mfma_f32_16x16x4_f32 {c_}, a{CSP+q}, v19, {c_}"))
    hook(31, 20, ins("v_and_b32 v2, 48, v1", "s_mul_i32 s77, s28, 320", f"s_add_u32 s77, s77, {CBASE}"))
    hook(31, 22, ins("v_add_u32 v3, s77, v2", f"v_add_u32 v0, {CBASE}, v2"))
    hook(31, 56, ins("s_mov_b32 exec_lo, 0x10001", "s_mov_b32 exec_hi, 0x10001",
                     *[f"ds_write_b128 v3, {ar(CSA+4*q,4)} offset:{64*q}" for q in range(5)], "s_mov_b64 exec, -1"))
    if typ == 2:
        hook(31, 24, ins("s_lshl_b32 s77, s28, 9", f"s_add_u32 s77, s77, {CBASE+1280}", "v_lshrrev_b32 v4, 1, v4"))
        hook(31, 26, ins("v_add_u32 v5, s77, v4", "v_add_u32 v6, s77, v2", f"v_add_u32 v4, {CBASE}, v4"))
        hook(31, 44, ins("s_mov_b64 exec, 0xffff",
                         *[f"ds_write2_b32 v5, v{ST+2*tb}, v{ST+2*tb+1} offset0:{16*tb} offset1:{64+16*tb}" for tb in range(4)], "s_mov_b64 exec, -1"))
    hook(31, 70, ins("s_waitcnt lgkmcnt(0)", "s_barrier"))
    def gen_step(i):
        items = []
        dm = list(sched[i])
        ws_ = [e for e in dm if e[0] == "W"]; xs_ = [e for e in dm if e[0] == "X"]
        dm = []
        while ws_ or xs_:
            if xs_: dm.append(xs_.pop(0))
            if ws_: dm.append(ws_.pop(0))
        last = (i == NS - 1)
        rq = []
        dq = []
        cand = [m for m in range(80) if m % 4 == 1 and m > bar_pos + 8]
        pos = {}
        for q, e in enumerate(dm):
            pos[cand[int(q * len(cand) / len(dm))]] = e
        for m in range(80):
            nb, t = m >> 2, m & 3
            tb = t if (nb & 1) == 0 else 3 - t
            n = lg.need({("A", i, nb), ("B", i, tb)}, cap=lg_cap)
            items.append(("wait", "lgkmcnt", n))
            A = ar(AF + 4*nb, 4); B = ar(BF + 16*(i&1) + 4*tb, 4)
            if typ == 2 and nb >= 4: A, B = B, A
            p_, r_ = accreg(nb, tb)
            c_ = vr(r_, 4, p_)
            items.append(("ins", f"v_mfma_f32_16x16x32_bf16 {c_}, {A}, {B}, {c_}"))
            if m == bar_pos and "nocs" not in hack:
                k = i & 3 if i < 28 else i - 24
                if i < 28:
                    items.append(("ins", "s_cmp_lg_u32 s74, 0"))
                    items.append(("ins", f"s_cbranch_scc1 L_cs{typ}_{k}"))
                else:
                    items.append(("ins", f"s_branch L_cs{typ}_{k}"))
                items.append(("ins", f"L_csr{typ}_{k}:"))
            for x in hooks.get((i, m), []):
                items += x()
            if not last:
                if t == 3:
                    rq.append(("A", nb, 0)); rq.append(("A", nb, 1))
                if m == bar_pos:
                    need = {("W", i+1)}
                    if i & 1: need.add(("X", (i+1) >> 1))
                    items.append(("wait", "vmcnt", vm.need(need)))
                    items.append(("ins", "s_barrier"))
                    if i < 28 and (i & 3) == 2:
                        items.append(("ins", "s_cmp_eq_u32 s29, s76"))
                        items.append(("ins", f"s_cbranch_scc1 L_sig{typ}"))
                        items.append(("ins", f"L_sigr{typ}:"))
                    rq = [("B", tb_) for tb_ in range(4)] + rq
                elif m > bar_pos and rq and not dq and m not in pos:
                    e = rq.pop(0)
                    items.append(("ins", b_read(i+1, e[1]) if e[0] == "B" else a_read(i+1, e[1], e[2])))
            if dq:
                for l in dq: items.append(("ins", l))
                dq = []
            if m in pos:
                e = pos[m]
                g1, g2 = (w_dma if e[0] == "W" else x_dma)(e[1], e[2])
                for l in g1: items.append(("ins", l))
                dq = g2
        assert not dq
        while rq:
            e = rq.pop(0)
            items.append(("ins", a_read(i+1, e[1], e[2])))
        return items

    iters = []
    for it in range(8):
        items = []
        for i in range(4*it, 4*it+4):
            items += gen_step(i)
        iters.append(items)
    def extra():
        a("s_cmp_eq_u32 s29, s75")
        a(f"s_cbranch_scc1 L_cst{typ}")
        a.label(f"L_cstr{typ}")
        a("s_sub_u32 s77, s29, 1")
        a("s_cmp_eq_u32 s77, s75")
        a("s_cselect_b32 s74, 1, 0")
        a(f"s_cmp_le_u32 s77, {7-nslot}")
        a("s_cselect_b32 s74, 1, s74")
        if "trace" in hack:
            a("s_memtime s[98:99]")
            a("s_memrealtime s[100:101]")
            a("s_waitcnt lgkmcnt(0)")
            a("s_sub_u32 s98, s98, s80")
            a("s_sub_u32 s100, s100, s92")
            a("v_cmp_eq_u32 vcc, s29, v1")
            a("v_mov_b32 v29, s98")
            a("v_cndmask_b32 v30, v30, v29, vcc")
            a("v_mov_b32 v29, s100")
            a("v_cndmask_b32 v31, v31, v29, vcc")
    loop_emit(a, iters, 7, f"L_g1_loop{typ}", 29, extra, f"L_g1_tail{typ}")
    a.label(f"L_g1_epi{typ}")

    if prof: prof_stamp(a, 2)
    if prof: a("s_waitcnt lgkmcnt(0)")
    lg = Counter(15)
    def cread(nb, r):
        lg.issue(("C", nb))
        a(f"ds_read_b128 {vr(r,4)}, v0 offset:{64*nb}")
    def lw(tags):
        n = lg.need(set(tags))
        if n is not None: a(f"s_waitcnt lgkmcnt({n})")
    def smread(tp):
        for half in range(2):
            for q in range(2):
                lg.issue(("SM", tp))
                a(f"ds_read_b128 {vr(8+8*half+4*q,4)}, v6 offset:{256*q + 64*(2*tp+half)}")
    if typ == 1:
        cread(4, 12); cread(5, 16)
    else:
        smread(0)
        for q in range(4):
            lg.issue(("CV", 0))
            a(f"ds_read2_b32 v[{24+2*q}:{25+2*q}], v4 offset0:{16*(4+2*q)} offset1:{16*(5+2*q)}")
        a("v_add_u32 v4, 768, v4")
    a("v_and_b32 v7, 48, v1")
    a("v_lshlrev_b32 v7, 5, v7")
    a("v_bfe_u32 v2, v1, 3, 1")
    a("v_lshl_add_u32 v2, v2, 8, v7")
    a("v_and_b32 v3, 7, v1")
    a("v_lshl_add_u32 v2, v3, 4, v2")
    if typ == 1:
        a("v_lshlrev_b32 v3, 4, v1")
    else:
        a("v_and_b32 v3, 15, v1")
        a("v_lshl_add_u32 v3, v3, 4, v7")
    a("s_lshl_b32 s58, s57, 3")
    a("s_lshl_b32 s59, s28, 1")
    a("s_add_u32 s58, s58, s59")
    a("s_and_b32 s60, s56, 15")
    a("s_lshl_b32 s60, s60, 7")
    a("s_add_u32 s60, s60, s58")
    a("s_cmp_ge_u32 s56, 16")
    a("s_cselect_b32 s61, 12, 11")
    a(f"s_mov_b32 s62, {WS_Q:#x}")
    a(f"s_cselect_b32 s62, {WS_KV:#x}, s62")
    a(f"s_mov_b32 s44, {f32(32**-0.5 * LOG2E)}")
    a("s_cselect_b32 s44, 1.0, s44")
    a("s_mov_b32 s45, s44")
    for hh in range(2):
        for tp in range(2):
            d = 64 + hh*2 + tp
            a(f"s_add_u32 s{d}, s60, {hh*64 + tp}")
            a(f"s_lshl_b32 s{d}, s{d}, s61")
            a(f"s_add_u32 s{d}, s{d}, s62")
    if typ == 1:
        a("s_lshr_b32 s60, s58, 2")
        a("s_mul_i32 s60, s60, 144")
        a("s_lshl_b32 s61, s56, 2")
        a("s_add_u32 s60, s60, s61")
        a("s_lshl_b32 s60, s60, 1")
        a("s_and_b32 s61, s28, 1")
        a("s_add_u32 s60, s60, s61")
        a("s_lshl_b32 s60, s60, 12")
        a(f"s_add_u32 s70, s60, {WS_H:#x}")
        a(f"s_mov_b32 s46, {f32(-LOG2E)}")
        a("s_mov_b32 s47, s46")
        a("s_mov_b32 s72, 1.0")
        a("s_mov_b32 s73, 1.0")
    else:
        a("s_sub_u32 s60, s56, 28")
        a("s_lshl_b32 s60, s60, 9")
        a("s_add_u32 s60, s60, s58")
        a("s_lshl_b32 s60, s60, 12")
        a(f"s_add_u32 s70, s60, {WS_KV:#x}")
        a(f"s_add_u32 s71, s70, 4096")
    LO = "op_sel_hi:[1,0,1]"; HI = "op_sel:[0,1,0] op_sel_hi:[1,1,1]"
    def p2(r): return f"v[{r}:{r+1}]"
    def corr(d, c, tb, stb):
        for r in range(2):
            a(f"v_pk_fma_f32 {p2(d+2*r)}, {p2(c+2*r)}, {p2(stb+2*tb)}, {p2(d+2*r)} {LO}")
    def qk_line(stb, rq, cb, tmp):
        for tb in range(4): a(f"v_mul_f32 v{rq+2*tb}, s44, v{stb+2*tb+1}")
        for hh in range(2):
            lw([("C", 2*hh), ("C", 2*hh+1)])
            for tb in range(4):
                base = (hh*4 + tb) * 8
                t0 = tmp + 8 * (tb & 1)
                for r in range(8):
                    a(f"v_accvgpr_read_b32 v{t0+r}, a{base+r}")
                corr(t0, cb[2*hh], tb, stb); corr(t0 + 4, cb[2*hh+1], tb, stb)
                for r in range(4):
                    a(f"v_pk_mul_f32 {p2(t0+2*r)}, {p2(t0+2*r)}, {p2(rq+2*tb)} op_sel_hi:[1,0]")
                for r in range(4):
                    a(f"v_cvt_pk_bf16_f32 v{t0+r}, v{t0+2*r}, v{t0+2*r+1}")
                a(f"buffer_store_dwordx4 {vr(t0,4)}, v2, s[4:7], s{64+hh*2+(tb>>1)} offen offset:{(tb&1)*128}{sc}")
    if typ == 1:
        PQ = 4
        for tb in range(4):
            a(f"v_mul_f32 v{PQ+2*tb}, s46, v{ST+2*tb+1}")
            a(f"v_rcp_f32 v{PQ+2*tb+1}, v{ST+2*tb+1}")
        cregs = {0: [12, 16, 12, 16], 1: [36, 44, 52, 60], 2: [160, 164, 168, 172], 3: [68, 76, 84, 92]}
        def nbs(e): return [4+2*e, 5+2*e, 12+2*e, 13+2*e]
        a("s_nop 3")
        for e in range(4):
            cb = cregs[e]; nb_ = nbs(e)
            if e in (1, 2):
                for q in range(4): cread(nbs(e+1)[q], cregs[e+1][q])
            lw([("C", nb_[0]), ("C", nb_[1])])
            if e == 0:
                for tb in range(4):
                    R = 32 + tb*8
                    corr(R, cb[0], tb, ST); corr(R + 4, cb[1], tb, ST)
                cread(nb_[2], cb[2]); cread(nb_[3], cb[3])
            for tb in range(4):
                R = 32 + (e*4+tb)*8
                pu, U = accreg(12 + 2*e, tb)
                if pu == "a":
                    for r in range(8):
                        a(f"v_accvgpr_read_b32 v{176+r}, a{U+r}")
                    U = 176
                if e > 0:
                    corr(R, cb[0], tb, ST); corr(R + 4, cb[1], tb, ST)
                for r in range(4):
                    a(f"v_pk_mul_f32 {p2(R+2*r)}, {p2(R+2*r)}, {p2(PQ+2*tb)} op_sel_hi:[1,0]")
                for r in range(8):
                    a(f"v_exp_f32 v{R+r}, v{R+r}")
                lw([("C", nb_[2]), ("C", nb_[3])])
                corr(U, cb[2], tb, ST); corr(U + 4, cb[3], tb, ST)
                for r in range(4):
                    a(f"v_pk_fma_f32 {p2(R+2*r)}, {p2(R+2*r)}, {p2(PQ+2*tb)}, {p2(PQ+2*tb)} op_sel:[0,1,1] op_sel_hi:[1,1,1]")
                for r in range(8):
                    a(f"v_rcp_f32 v{R+r}, v{R+r}")
                for r in range(4):
                    a(f"v_pk_mul_f32 {p2(R+2*r)}, {p2(R+2*r)}, {p2(U+2*r)}")
                for r in range(4):
                    a(f"v_cvt_pk_bf16_f32 v{R+r}, v{R+2*r}, v{R+2*r+1}")
                a(f"buffer_store_dwordx4 v[{R}:{R+3}], v3, s[4:7], s70 offen offset:{tb*1024}{sc}")
                if e == 0 and tb == 1:
                    for q in range(4): cread(q, 160 + 4*q)
            if e < 3:
                a("s_add_u32 s70, s70, 8192")
            if e == 0:
                for q in range(4): cread(nbs(1)[q], cregs[1][q])
                qk_line(ST, 12, [160, 164, 168, 172], 176)
    else:
        a("s_nop 3")
        for tp in range(2):
            lw([("SM", tp)])
            for nb in range(4, 20):
                hd, db = (nb - 4) >> 1, nb & 1
                lw([("CV", (nb - 4) >> 3)])
                cp = (24 if nb < 12 else 40 - 8) + ((nb - 4) & ~1)
                rr = []
                for half in range(2):
                    p_, r_ = accreg(nb, 2*tp + half)
                    if p_ == "a":
                        t = 72 + 4*half + 32*db
                        for r in range(4):
                            a(f"v_accvgpr_read_b32 v{t+r}, a{r_+r}")
                        r_ = t
                    rr.append(r_)
                for half in range(2):
                    for r in range(2):
                        d = p2(rr[half] + 2*r)
                        a(f"v_pk_fma_f32 {d}, {p2(8+8*half+2*r)}, {p2(cp)}, {d} {HI if db else LO}")
                for half in range(2):
                    for r in range(2):
                        d = p2(rr[half] + 2*r)
                        a(f"v_pk_mul_f32 {d}, {d}, {p2(12+8*half+2*r)}")
                for half in range(2):
                    for r in range(2):
                        a(f"v_cvt_pk_bf16_f32 v{rr[0]+2*half+r}, v{rr[half]+2*r}, v{rr[half]+2*r+1}")
                a(f"buffer_store_dwordx4 {vr(rr[0],4)}, v3, s[4:7], s{70+tp} offen offset:{2048 + db*256}{sc}")
                if db and hd < 7:
                    a(f"s_add_u32 s{70+tp}, s{70+tp}, {64*4096}")
                if tp == 0 and nb == 5:
                    for q in range(4):
                        lg.issue(("CV", 1))
                        a(f"ds_read2_b32 v[{40+2*q}:{41+2*q}], v4 offset0:{16*(2*q)} offset1:{16*(2*q+1)}")
            if tp == 0:
                smread(1)
                for q in range(4): cread(q, [136, 140, 168, 172][q])
                for tb in range(4):
                    lg.issue("S1")
                    a(f"ds_read2_b32 {p2(200+2*tb)}, v5 offset0:{16*tb} offset1:{64+16*tb}")
        lw(["S1"])
        qk_line(200, 232, [136, 140, 168, 172], 8)
    if prof:
        prof_stamp(a, 3)
        a("s_waitcnt vmcnt(0)")
        prof_stamp(a, 4); prof_real(a, 1)
        prof_store(a, 5, 4, 28, 1)
        if "trace" in hack:
            a("s_add_u32 s96, s96, 0x40000")
            a("v_mbcnt_lo_u32_b32 v0, -1, 0")
            a("v_lshlrev_b32 v0, 3, v0")
            a("v_cmp_gt_u32 vcc, 64, v0")
            a("s_and_saveexec_b64 s[98:99], vcc")
            a("buffer_store_dwordx2 v[30:31], v0, s[4:7], s96 offen")
    a("s_endpgm")
    for k in range(8):
        if "nocs" in hack: break
        a.label(f"L_cs{typ}_{k}")
        a("s_waitcnt lgkmcnt(0)")
        for w in range(4):
            if w < 3:
                a(f"s_cmp_lg_u32 s28, {w}")
                a(f"s_cbranch_scc1 L_cs{typ}_{k}_{w+1}")
            for q in range(5):
                c_ = ar(CSA + 4*q, 4)
                a(f"v_mfma_f32_16x16x32_bf16 {c_}, {ar(AF+4*(5*w+q),4)}, {vr(ONES,4)}, {c_}")
            a(f"s_branch L_csr{typ}_{k}")
            if w < 3: a.label(f"L_cs{typ}_{k}_{w+1}")
    a.label(f"L_cst{typ}")
    a("v_and_b32 v18, 48, v1")
    a("s_mov_b32 exec_lo, 0x10001")
    a("s_mov_b32 exec_hi, 0x10001")
    for q in range(5):
        a(f"buffer_store_dwordx4 {ar(CSA+4*q,4)}, v18, s[4:7], s78 offen offset:{64*q} sc1")
    a("s_mov_b64 exec, -1")
    a("s_nop 1")
    for r in range(20): a(f"v_accvgpr_write_b32 a{CSA+r}, 0")
    a(f"s_branch L_cstr{typ}")
    a.label(f"L_sig{typ}")
    a("s_mov_b64 exec, 1")
    a("buffer_atomic_add v7, off, s[24:27], 0 sc1")
    a("s_mov_b64 exec, -1")
    a(f"s_branch L_sigr{typ}")
    a.label(f"L_slow{typ}")
    a("s_mov_b32 s29, 0x40000")
    a.label(f"L_slowl{typ}")
    a("buffer_load_dword v18, off, s[24:27], 0 sc1")
    a("s_waitcnt vmcnt(0)")
    a("v_readfirstlane_b32 s77, v18")
    a("s_cmp_ge_u32 s77, 256")
    a(f"s_cbranch_scc1 L_slowr{typ}")
    a("s_sleep 2")
    a("s_sub_u32 s29, s29, 1")
    a("s_cmp_lg_u32 s29, 0")
    a(f"s_cbranch_scc1 L_slowl{typ}")
    a(f"s_branch L_slowr{typ}")
```

```python
from gen_common import *
from gen_g1 import loop_emit
from gen_att import w_lane_setup, w_read_setup, emit_items

KVBASE = 0
KSLOT = 8192
KT = 144

RQ = 16
RS = 32
RM = 64
RO = 96
RL = 128
RP = 136
RK = 152
RV = 168
R1 = 184
RLV = 188
VIDX = 14; VSIG = 10; VFL = 11; VSA = 12; VFA = 13

def att_body(a, o, SYNC):
    prof = o.get("prof", False)
    rs = o.get("rs", 3)
    pk = o.get("pk", 0)
    pair = o.get("pair", 1)
    R = o.get("R", 5)
    vm = Counter(63); lg = Counter(15)
    a("v_lshlrev_b32 v2, 4, v1")
    a(f"v_add_u32 v3, {KVBASE}, v2")
    a("s_lshl_b32 s58, s56, 6")
    a("s_lshl_b32 s59, s57, 3")
    a("s_lshl_b32 s60, s28, 1")
    a("s_add_u32 s59, s59, s60")
    a("s_add_u32 s60, s58, s59")
    a("s_lshl_b32 s60, s60, 11")
    a(f"s_add_u32 s60, s60, {WS_Q:#x}")
    a("s_lshl_b32 s33, s58, 12")
    a(f"s_add_u32 s33, s33, {WS_KV:#x}")
    a("s_mov_b32 s36, s33")
    a("s_lshl_b32 s41, s28, 11")
    a("s_add_u32 s33, s33, s41")
    a(f"s_add_u32 s41, s41, {KVBASE}")
    a("s_lshr_b32 s61, s59, 2")
    a(f"s_mul_i32 s61, s61, {KT}")
    a("s_add_u32 s61, s61, s56")
    a("s_lshl_b32 s61, s61, 13")
    a("s_and_b32 s62, s59, 3")
    a("s_lshl_b32 s62, s62, 11")
    a("s_add_u32 s61, s61, s62")
    a(f"s_add_u32 s61, s61, {WS_H + 112*8192:#x}")
    a("s_add_u32 s62, s61, 2048")
    fv = o.get("fv", 1)
    a(f"s_lshl_b32 s63, s59, {(10, 11, 15)[fv]}")
    a(f"s_lshl_b32 s67, s56, {(2, 7, 11)[fv]}")
    a("s_add_u32 s63, s63, s67")
    a(f"s_add_u32 s63, s63, {WS_FLAG:#x}")
    a("s_bfe_u32 s66, s2, 0x20001")
    a("s_lshl_b32 s66, s66, 2")
    a("s_bfe_u32 s67, s2, 0x20003")
    a("s_add_u32 s66, s66, s67")
    a("s_lshl_b32 s66, s66, 1")
    a("s_add_u32 s66, s66, s28")
    a(f"s_lshl_b32 s66, s66, {(11, 12, 16)[fv]}")
    if fv != 1:
        a("s_and_b32 s67, s2, 1")
        a("s_lshl_b32 s67, s67, 3")
        a("s_add_u32 s67, s67, s57")
        a("s_lshl_b32 s67, s67, 7")
        a("s_add_u32 s66, s66, s67")
    a(f"s_add_u32 s66, s66, {WS_FLAG:#x}")
    a("s_waitcnt lgkmcnt(0)")
    srd(a, 4, 50, WS_END)
    def kv_dma(stage):
        vm.issue(("KV", stage)); vm.issue(("KV", stage))
        return [[f"s_add_u32 m0, s41, {(stage % R) * KSLOT}"],
                ["buffer_load_dwordx4 v2, s[4:7], s33 offen lds"],
                ["buffer_load_dwordx4 v2, s[4:7], s33 offen offset:1024 lds", "s_add_u32 s33, s33, 8192"]]
    def flat(gs):
        r = []
        for i, g in enumerate(gs):
            r += g
            if i == 0: r.append("s_nop 0")
        return r
    for l in flat(kv_dma(0)): a(l)
    for i in range(4):
        vm.issue("Q")
        a(f"buffer_load_dwordx4 {vr(RQ+4*i,4)}, v2, s[4:7], s60 offen offset:{1024*i}")
    for st in range(1, R - 1):
        for l in flat(kv_dma(st)): a(l)
    a(f"v_mov_b32 v{VSIG}, 0")
    a(f"v_and_b32 v{VFA}, 3, v1")
    a(f"v_lshlrev_b32 v{VFA}, 2, v{VFA}")
    a(f"v_add_u32 v{VFA}, {SYNC}, v{VFA}")
    a("s_lshl_b32 s58, s28, 2")
    a(f"s_add_u32 s58, s58, {SYNC}")
    a(f"v_mov_b32 v{VSA}, s58")
    a(f"ds_write_b32 v{VSA}, v{VSIG}")
    a(f"ds_write_b32 v{VSA}, v{VSIG} offset:16")
    a(f"ds_write_b32 v{VSA}, v{VSIG} offset:32")
    a("s_mov_b32 s37, 0")
    a("v_lshrrev_b32 v4, 4, v1")
    a("v_lshrrev_b32 v5, 2, v1")
    a("v_xor_b32 v4, v4, v5")
    a("v_and_b32 v4, 1, v4")
    a("v_cmp_eq_u32 vcc, 0, v4")
    a("v_mov_b32 v5, 0x3f803f80")
    if rs == 3:
        a("v_and_b32 v4, 4, v1")
        a("v_cmp_eq_u32 vcc, 0, v4")
        a("s_nop 1")
        for i in range(2):
            a(f"v_cndmask_b32 v{R1+i}, 0, v5, vcc")
            a(f"v_cndmask_b32 v{R1+2+i}, v5, 0, vcc")
        a("v_and_b32 v4, 1, v1")
        a("v_mul_u32_u24 v4, 0xaaaa, v4")
        a(f"v_add_u32 v{VIDX}, 0x4444, v4")
    else:
        for i in range(4):
            a(f"v_cndmask_b32 v{R1+i}, 0, v5, vcc")
    for r in range(RO, RO + 40): a(f"v_mov_b32 v{r}, 0")
    for r in range(RLV, RLV + 4): a(f"v_mov_b32 v{r}, 0")
    a("v_and_b32 v6, 7, v1")
    a("v_bfe_u32 v7, v1, 3, 1")
    a("v_lshl_add_u32 v6, v7, 6, v6")
    a("v_bfe_u32 v7, v1, 4, 1")
    a("v_lshl_add_u32 v6, v7, 3, v6")
    a("v_lshrrev_b32 v7, 5, v1")
    a("v_lshl_add_u32 v6, v7, 4, v6")
    a("v_lshlrev_b32 v6, 4, v6")

    def rd(kind, t, s):
        base = (RK if kind == "K" else RV) + 8 * (t & 1) + 4 * s
        off = ((t >> 1) % R) * KSLOT + (t & 1) * 4096 + (0 if kind == "K" else 2048) + s * 1024
        lg.issue((kind, t, s))
        return f"ds_read_b128 {vr(base,4)}, v3 offset:{off}"
    def mS(X, t, s, c0=None):
        D = vr(RS + 16*X, 16)
        C = D if s == 1 else (c0 if c0 is not None else vr(RM + 16*X, 16))
        return ([("K", t, s)], f"v_mfma_f32_32x32x16_bf16 {D}, {vr(RK+8*(t&1)+4*s,4)}, {vr(RQ+8*X+4*s,4)}, {C}")
    def mPV(X, t, s):
        D = vr(RO + 16*X, 16)
        return ([("V", t, s)], f"v_mfma_f32_32x32x16_bf16 {D}, {vr(RV+8*(t&1)+4*s,4)}, {vr(RP+8*X+4*s,4)}, {D}")
    def mL(X, s):
        D = vr(RL + 4*X, 4)
        if rs == 3: return ([], f"v_smfmac_f32_16x16x64_bf16 {D}, {vr(R1,4)}, {vr(RP+8*X,8)}, v{VIDX}")
        return ([], f"v_mfma_f32_16x16x32_bf16 {D}, {vr(R1,4)}, {vr(RP+8*X+4*s,4)}, {D}")

    def valu(X):
        S = RS + 16*X; P = RP + 8*X
        e = [(8, f"v_exp_f32 v{S+i}, v{S+i}") for i in range(16)]
        c = [(4, f"v_cvt_pk_bf16_f32 v{P+i}, v{S+2*i}, v{S+2*i+1}") for i in range(8)]
        def adds(k):
            if (k >> 2) < rs: return []
            L = RLV + 2*X
            if pk: return [(4, f"v_pk_add_f32 v[{L}:{L+1}], v[{L}:{L+1}], v[{S+2*k}:{S+2*k+1}]")]
            return [(4, f"v_add_f32 v{L}, v{L}, v{S+2*k}"), (4, f"v_add_f32 v{L+1}, v{L+1}, v{S+2*k+1}")]
        seq = []
        for i in range(16):
            seq.append(e[i])
            if i >= 2 and i % 2 == 0 and i < 14:
                k = i // 2 - 1
                seq.append(c[k]); seq += adds(k)
        return seq + [c[6]] + adds(6) + [c[7]] + adds(7)

    NT = 64
    slow = []
    def phase(X, t, do_valu=True):
        Y = 1 - X
        items = []
        ms = []
        ts = t if X == 0 else t + 1
        tp = t - 1 if X == 0 else t
        if ts < NT: ms += [(32, mS(Y, ts, 0)), (32, mS(Y, ts, 1))]
        if tp >= 0:
            for s in range(2):
                hasl = (s == o.get("lpos", 0)) if rs == 3 else (s < rs)
                if hasl and pair: ms.append((0, mL(Y, s)))
                ms.append((32, mPV(Y, tp, s)))
                if hasl and not pair: ms.append((16, mL(Y, s)))
        extra = []
        pre = []
        if X == 0 and (t & 1) and t + 1 < NT:
            pre = [("chk", (t + 1) >> 1)]
        if t + 1 < NT:
            kind = "K" if X == 0 else "V"
            extra += [("rd", kind, t + 1, 0), ("rd", kind, t + 1, 1)]
        if X == 0 and not (t & 1) and t + 2 < NT:
            extra.append(("sig", (t >> 1) + 1))
        if X == 1 and not (t & 1) and t + 2 < NT:
            extra.append(("frd", (t >> 1) + 1))
        if X == 0 and (t & 1):
            st = ((t + 1) >> 1) - 2 + R
            if st < NT // 2: extra.append(("dma", st))
        va = valu(X) if do_valu else []
        tot = sum(c for c, _ in va); mt = sum(c for c, _ in ms)
        vi = 0; acc = 0; done = 0
        dq = []
        for mi, (mc, (deps, ins)) in enumerate(ms):
            n = lg.need(set(deps)) if deps else None
            items.append(("wait", "lgkmcnt", n))
            items.append(("ins", ins))
            if mi == 0:
                for p in pre:
                    items.append(("wait", "lgkmcnt", lg.need({("F", p[1])})))
                    items.append(("ins", f"v_cmp_ge_u32 vcc, s37, v{VFL}"))
                    items.append(("chk", p[1]))
                    items.append(("ins", "s_add_u32 s37, s37, 1"))
            if mc == 0: continue
            if dq:
                for l in dq.pop(0): items.append(("ins", l))
            elif extra:
                e = extra.pop(0)
                if e[0] == "rd":
                    items.append(("ins", rd(e[1], e[2], e[3])))
                    if extra and extra[0][0] == "rd" and mi == 0:
                        e = extra.pop(0); items.append(("ins", rd(e[1], e[2], e[3])))
                elif e[0] == "sig":
                    items.append(("ins", f"v_add_u32 v{VSIG}, 1, v{VSIG}"))
                    items.append(("wait", "vmcnt", vm.need({("KV", e[1])})))
                    lg.issue(("SG", e[1]))
                    items.append(("ins", f"ds_write_b32 v{VSA}, v{VSIG}"))
                elif e[0] == "frd":
                    if mi < len(ms) - 2:
                        extra.insert(0, e)
                    else:
                        lg.issue(("F", e[1]))
                        items.append(("ins", f"ds_read_b32 v{VFL}, v{VFA}"))
                else:
                    dq = kv_dma(e[1])
                    for l in dq.pop(0): items.append(("ins", l))
            acc += mc
            while vi < len(va) and (done + va[vi][0] / 2 <= tot * acc / mt or mi == len(ms) - 1):
                items.append(("ins", va[vi][1])); done += va[vi][0]; vi += 1
        while dq:
            for l in dq.pop(0): items.append(("ins", l))
        assert not dq and not extra and vi == len(va), (X, t, dq, extra)
        return items
    def fix(items, tag):
        r = []
        for x in items:
            if x[0] == "chk":
                k = len(slow); slow.append(k)
                r.append(("ins", f"s_cbranch_vccnz L_att_slow{k}"))
                r.append(("ins", f"L_att_ret{k}:"))
            else: r.append(x)
        return r

    n = vm.need({("KV", 0), "Q"})
    a(f"s_waitcnt vmcnt({n}) lgkmcnt(0)")
    a("s_barrier")
    if prof: prof_stamp(a, 1)
    a(rd("K", 0, 0)); a(rd("K", 0, 1)); a(rd("V", 0, 0)); a(rd("V", 0, 1))
    a("s_waitcnt lgkmcnt(0)"); lg.need({("V", 0, 1)})
    for X in range(2):
        for s in range(2): a(mS(X, 0, s, c0="0")[1])
    a("s_nop 7"); a("s_nop 7")
    for X in range(2):
        S = RS + 16*X
        a(f"v_max3_f32 v8, v{S}, v{S+1}, v{S+2}")
        for i in range(3, 15, 2): a(f"v_max3_f32 v8, v8, v{S+i}, v{S+i+1}")
        a(f"v_max_f32 v8, v8, v{S+15}")
        a("v_mov_b32 v9, v8")
        a("s_nop 1")
        a("v_permlane32_swap_b32 v8, v9")
        a("s_nop 1")
        a("v_max_f32 v8, v8, v9")
        for i in range(16): a(f"v_sub_f32 v{RM+16*X+i}, 0, v8")
    a("s_nop 1")
    for s in range(2): a(mS(0, 0, s)[1])
    a("s_nop 7"); a("s_nop 7")
    if o.get("prioA", 0): a(f"s_setprio {o['prioA']}")
    emit_items(a, phase(0, 0)); emit_items(a, phase(1, 0))
    def interval(s):
        return phase(0, 2*s-1) + phase(1, 2*s-1) + phase(0, 2*s) + phase(1, 2*s)
    nit = (32 - R + 1) // R
    iters = []
    for it in range(nit):
        items = []
        for s in range(1 + R*it, 1 + R + R*it): items += interval(s)
        iters.append(items)
    first = fix(iters[0], 0)
    its = [first]
    for it in range(1, nit):
        k = 0; r = []
        for x in iters[it]:
            if x[0] == "chk":
                r.append(("ins", f"s_cbranch_vccnz L_att_slow{k}")); r.append(("ins", f"L_att_ret{k}:")); k += 1
            else: r.append(x)
        its.append(r)
    tail = []
    for s in range(1 + R*nit, 32): tail += interval(s)
    tail += phase(0, 63) + phase(1, 63)
    its.append(fix(tail, 1))
    a(f"s_mov_b32 s29, {nit}")
    loop_emit(a, its, nit, "L_att_loop", 29)
    a("s_nop 1")
    emit_items(a, phase(0, 64, do_valu=False))
    if prof: prof_stamp(a, 2)
    a("s_nop 7"); a("s_nop 7")
    for X in range(2):
        L = RL + 4*X
        if rs == 3: a(f"v_add_f32 v{L}, v{L}, v{L+1}")
        if rs < 2:
            a(f"v_add_f32 v8, v{RLV+2*X}, v{RLV+2*X+1}")
            a("v_mov_b32 v9, v8")
            a("s_nop 1")
            a("v_permlane32_swap_b32 v8, v9")
            a("s_nop 1")
            a("v_add_f32 v8, v8, v9")
            a(f"v_add_f32 v{L}, v{L}, v8")
    a(f"v_mov_b32 v8, {f32(2.0**40)}")
    a(f"v_cmp_nle_f32 vcc, v{RL}, v8")
    a(f"v_cmp_nle_f32 s[64:65], v{RL+4}, v8")
    a("s_or_b64 vcc, vcc, s[64:65]")
    if o.get("forcefb"): a("s_branch L_att_fb")
    a("s_cbranch_vccnz L_att_fb")
    a.label("L_att_fin")
    for X in range(2):
        L = RL + 4*X; O = RO + 16*X
        a(f"v_rcp_f32 v{L}, v{L}")
        a("s_nop 0")
        for i in range(16): a(f"v_mul_f32 v{O+i}, v{O+i}, v{L}")
        for i in range(8):
            g4 = (i >> 2) + 2 * ((i >> 1) & 1)
            a(f"v_cvt_pk_bf16_f32 v{RP+8*X+i}, v{O+4*g4+2*(i&1)}, v{O+4*g4+2*(i&1)+1}")
        for s in range(2):
            a(f"buffer_store_dwordx4 {vr(RP+8*X+4*s,4)}, v6, s[4:7], s{61+X} offen offset:{512*s} sc1")
    if prof: prof_stamp(a, 3)
    a("v_mov_b32 v8, 1")
    for i in range(4): a(f"v_mov_b32 v{RM+i}, 1")
    a("v_lshlrev_b32 v7, 7, v1")
    a(f"v_lshlrev_b32 v9, {(2, 7, 11)[fv]}, v1")
    a(f"s_mov_b64 exec, {('0xffff', '0xff', '-1')[fv]}")
    a("s_waitcnt vmcnt(0)")
    if fv == 0: a("buffer_store_dword v8, v7, s[4:7], s63 offen sc1")
    else: a(f"buffer_store_dwordx4 {vr(RM,4)}, v2, s[4:7], s63 offen sc1")
    if fv == 2: a(f"buffer_store_dwordx4 {vr(RM,4)}, v2, s[4:7], s63 offen offset:1024 sc1")
    if prof: prof_stamp(a, 4); prof_real(a, 1); a("s_waitcnt lgkmcnt(0)")
    a("s_cmp_ge_u32 s28, 2")
    a("s_cbranch_scc1 L_att_end")
    a("s_mov_b32 exec_lo, -1")
    a("s_mov_b32 exec_hi, 0")
    a("s_mov_b32 s29, 0x40000")
    PD = o.get("pd", 1)
    for i in range(PD - 1):
        a(f"buffer_load_dword v{RS+i}, v9, s[4:7], s66 offen sc1")
        a(f"s_sleep {o.get('sleep', 1)}")
    a.label("L_poll")
    for i in range(PD):
        a(f"buffer_load_dword v{RS+(i+PD-1)%PD}, v9, s[4:7], s66 offen sc1")
        a(f"s_waitcnt vmcnt({PD-1})")
        a(f"v_cmp_ne_u32 vcc, 1, v{RS+i}")
        a("s_cbranch_vccz L_ready")
        a(f"s_sleep {o.get('sleep', 1)}")
    a("s_sub_u32 s29, s29, 1")
    a("s_cmp_lg_u32 s29, 0")
    a("s_cbranch_scc1 L_poll")
    a.label("L_ready")
    a(f"ds_write_b32 v{VSA}, v8 offset:16")
    if prof: prof_stamp(a, 4); prof_real(a, 1)
    a.label("L_att_end")
    if prof:
        a("s_mov_b64 exec, -1")
        prof_store(a, 5, 4, 27, 2, nwaves=8)
    a("s_endpgm")
    for k in slow:
        a.label(f"L_att_slow{k}")
        a(f"ds_read_b32 v{VFL}, v{VFA}")
        a("s_waitcnt lgkmcnt(0)")
        a(f"v_cmp_ge_u32 vcc, s37, v{VFL}")
        a(f"s_cbranch_vccnz L_att_slow{k}")
        a(f"s_branch L_att_ret{k}")

    a.label("L_att_fb")
    MX = RM; LS = RM + 2
    for r in range(RO, RO + 32): a(f"v_mov_b32 v{r}, 0")
    for X in range(2):
        a(f"v_mov_b32 v{MX+X}, {f32(-3.0e38)}")
        a(f"v_mov_b32 v{LS+X}, 0")
    a("s_mov_b32 s29, 64")
    a.label("L_att_fbloop")
    for i in range(2):
        a(f"buffer_load_dwordx4 {vr(RK+4*i,4)}, v2, s[4:7], s36 offen offset:{1024*i}")
    for i in range(2):
        a(f"buffer_load_dwordx4 {vr(RV+4*i,4)}, v2, s[4:7], s36 offen offset:{2048+1024*i}")
    a("s_add_u32 s36, s36, 4096")
    a("s_waitcnt vmcnt(0)")
    for X in range(2):
        for s in range(2): a(mS(X, 0, s, c0="0")[1])
    a("s_nop 7"); a("s_nop 7")
    for X in range(2):
        S = RS + 16*X; O = RO + 16*X; P = RP + 8*X
        a(f"v_max3_f32 v8, v{S}, v{S+1}, v{MX+X}")
        for i in range(2, 16, 2): a(f"v_max3_f32 v8, v8, v{S+i}, v{S+i+1}")
        a("v_mov_b32 v9, v8")
        a("s_nop 1")
        a("v_permlane32_swap_b32 v8, v9")
        a("s_nop 1")
        a("v_max_f32 v8, v8, v9")
        a(f"v_sub_f32 v9, v{MX+X}, v8")
        a("v_exp_f32 v9, v9")
        a(f"v_mov_b32 v{MX+X}, v8")
        for i in range(16): a(f"v_sub_f32 v{S+i}, v{S+i}, v8")
        for i in range(16): a(f"v_exp_f32 v{S+i}, v{S+i}")
        a(f"v_mul_f32 v{LS+X}, v{LS+X}, v9")
        for i in range(16): a(f"v_mul_f32 v{O+i}, v{O+i}, v9")
        for i in range(16): a(f"v_add_f32 v{LS+X}, v{LS+X}, v{S+i}")
        for i in range(8): a(f"v_cvt_pk_bf16_f32 v{P+i}, v{S+2*i}, v{S+2*i+1}")
        a("s_nop 1")
        for s in range(2): a(mPV(X, 0, s)[1])
    a("s_nop 7"); a("s_nop 7")
    a("s_sub_u32 s29, s29, 1")
    a("s_cmp_lg_u32 s29, 0")
    a("s_cbranch_scc1 L_att_fbloop")
    for X in range(2):
        a(f"v_mov_b32 v9, v{LS+X}")
        a("s_nop 1")
        a(f"v_permlane32_swap_b32 v{LS+X}, v9")
        a("s_nop 1")
        a(f"v_add_f32 v{RL+4*X}, v{LS+X}, v9")
    a("s_branch L_att_fin")

def merge_emit(a, seqs):
    ref = seqs[0]
    for q in seqs[1:]:
        assert len(q) == len(ref)
        for x, y in zip(q, ref):
            assert x[0] == y[0] and x[1] == y[1], (x, y)
    pend = {}
    for idx, x in enumerate(ref):
        if x[0] == "wait":
            ns = [q[idx][2] for q in seqs if q[idx][2] is not None]
            if ns: pend[x[1]] = min(ns + [pend.get(x[1], 99)])
        else:
            if pend: a("s_waitcnt " + " ".join(f"{k}({v})" for k, v in sorted(pend.items(), reverse=True)))
            pend = {}
            a(x[1])
    assert not pend

ACC = 16; FB = 48; HS = 80; XT = 240
def gemm_body(a, o, WB, SYNC):
    prof = o.get("prof", False)
    NWS = o.get("NWS", 7); NHS = 5; NH = 4 * NHS; NST = KT // 4
    vm = Counter(63); lg = Counter(15)
    pf = o.get("pf", 0)
    def pf_addr(r, lab):
        a(f"s_add_u32 s68, s70, {lab}-L_s3_pc")
        a(f"s_addc_u32 s69, s71, {0 if lab != 's3_kernel' else -1}")
        a(f"s_mov_b32 s72, L_s3_end-{lab}")
        a(f"v_and_b32 v{r}, 255, v0")
        a(f"v_lshlrev_b32 v{r}, 7, v{r}")
        a(f"v_min_u32 v{r}, s72, v{r}")
        a(f"v_mov_b32 v{r+1}, s69")
        a(f"v_add_co_u32 v{r}, vcc, s68, v{r}")
        a(f"v_addc_co_u32 v{r+1}, vcc, 0, v{r+1}, vcc")
    if pf:
        a("s_getpc_b64 s[70:71]")
        a.label("L_s3_pc")
    if pf & 1:
        pf_addr(238, "s3_kernel")
        a("global_load_dword v240, v[238:239], off")
    if pf & 2: pf_addr(236, "L_dn_tail" if pf & 4 else "s3_kernel")
    a("s_bfe_u32 s57, s2, 0x20001")
    a("s_lshl_b32 s57, s57, 2")
    a("s_bfe_u32 s58, s2, 0x20003")
    a("s_add_u32 s57, s57, s58")
    a("s_and_b32 s58, s2, 1")
    a("s_lshl_b32 s58, s58, 3")
    a("s_lshr_b32 s59, s2, 5")
    a("s_add_u32 s58, s58, s59")
    a("v_lshlrev_b32 v2, 4, v1")
    a(f"s_mul_i32 s36, s57, {KT*8192}")
    a(f"s_add_u32 s36, s36, {WS_H:#x}")
    a("s_lshl_b32 s34, s28, 11")
    a("s_lshl_b32 s33, s28, 16")
    a("s_lshl_b32 s60, s58, 7")
    a("s_add_u32 s33, s33, s60")
    a("s_mov_b32 s61, s33")
    a("s_lshl_b32 s42, s28, 12")
    a(f"s_add_u32 s42, s42, {WB}")
    a(f"s_add_u32 s43, s42, {NWS*16384}")
    a("s_mov_b32 s40, s42")
    a("v_lshrrev_b32 v20, 3, v1")
    a("v_and_b32 v21, 6, v20")
    a("v_and_b32 v22, 7, v1")
    a("v_xor_b32 v21, v21, v22")
    a("v_lshlrev_b32 v21, 4, v21")
    a("v_lshl_add_u32 v4, v20, 11, v21")
    for q in range(1, 4): a(f"v_add_u32 v{4+q}, {16384*q - 1024*q}, v4")
    a("v_lshrrev_b32 v20, 2, v1")
    a("v_and_b32 v21, 3, v1")
    a("v_lshlrev_b32 v21, 3, v21")
    a("v_lshl_add_u32 v21, v20, 7, v21")
    a(f"v_add_u32 v21, {WB}, v21")
    a("v_bfe_u32 v20, v1, 3, 2")
    for nb in range(4):
        a(f"v_xor_b32 v22, {nb}, v20")
        a(f"v_lshl_add_u32 v{8+nb}, v22, 5, v21")
    a("v_and_b32 v3, 15, v1")
    a("v_lshlrev_b32 v3, 11, v3")
    a("v_bfe_u32 v20, v1, 4, 1")
    a("v_lshl_add_u32 v3, v20, 5, v3")
    a("v_lshrrev_b32 v20, 5, v1")
    a("v_lshl_add_u32 v3, v20, 4, v3")
    a("v_and_b32 v0, 3, v1")
    a("v_lshlrev_b32 v0, 2, v0")
    a(f"v_add_u32 v0, {SYNC + 32}, v0")
    a("s_lshl_b32 s59, s28, 2")
    a(f"s_add_u32 s59, s59, {SYNC + 32}")
    a("v_mov_b32 v14, s59")
    a("v_mov_b32 v13, 0")
    a("s_lshr_b32 s59, s28, 1")
    a("s_lshl_b32 s59, s59, 2")
    a(f"s_add_u32 s59, s59, {SYNC + 16}")
    a("v_mov_b32 v12, s59")
    a("s_mov_b32 s37, 0")
    a("s_mov_b32 s38, 0")
    a("s_mov_b32 s46, 16384")
    a(f"s_mov_b32 s47, {-(NWS-1)*16384}")
    a("s_lshl_b32 s64, s57, 2")
    a("s_add_u32 s64, s64, s28")
    a("s_lshl_b32 s64, s64, 16")
    a("s_add_u32 s64, s64, s60")
    a("s_add_u32 s65, s64, 32768")
    a("s_waitcnt lgkmcnt(0)")
    srd(a, 4, 50, WS_END)
    srd(a, 24, 50, KT * 8192)
    a("s_add_u32 s24, s24, s36")
    a("s_addc_u32 s25, s25, 0")
    srd(a, 8, 48, 3584 * 2048)
    srd(a, 16, 54, 2048 * 2048)
    srd(a, 20, 44, 2048 * 2048)
    def wm0():
        return ["s_mov_b32 m0, s40", "s_add_u32 s40, s40, 16384"]
    def wq(st, q):
        vm.issue(("W", st))
        r = [f"buffer_load_dwordx4 v{4+q}, s[8:11], s33 offen offset:{1024*q} lds"]
        if q == 1: r += ["s_cmp_eq_u32 s40, s43", "s_cselect_b32 s40, s42, s40"]
        if q == 3: r.append(f"s_add_u32 s33, s33, {4*65536}")
        return r
    def hload(u, tt):
        vm.issue(("H", u))
        r = [f"buffer_load_dwordx4 {vr(HS+8*(u % NH)+4*tt,4)}, v2, s[24:27], s34 offen offset:{1024*tt}"]
        if tt == 1: r.append("s_add_u32 s34, s34, 8192")
        return r
    def wread(u, nb, rd_):
        lg.issue(("A", u, nb))
        return f"ds_read_b64_tr_b16 {vr(FB+16*(u&1)+4*nb+2*rd_,2)}, v{8+nb} offset:{(u&3)*4096 + rd_*2048}"
    a("s_barrier")
    def wall(st):
        for l in wm0(): a(l)
        for q in range(4):
            for l in wq(st, q): a(l)
    DW = o.get("DW", 3); DH = o.get("DH", 3); DT = o.get("DT", 10)
    wall(0)
    for q in range(4):
        vm.issue("X")
        a(f"buffer_load_dwordx4 {vr(XT+4*q,4)}, v3, s[16:19], s{64+(q>>1)} offen offset:{64*(q&1)}")
    nw = [1]
    for j in range(-max(DW, DH), 0):
        if j + DW >= 1: wall(j + DW); nw[0] += 1
        if j + DH >= 0:
            for u in range(4*(j + DH), 4*(j + DH) + 4):
                for tt in range(2):
                    for l in hload(u, tt): a(l)
    assert nw[0] == DW
    a(f"s_waitcnt vmcnt({vm.need({('W', 0)})})")
    a("v_add_u32 v13, 1, v13")
    a("ds_write_b32 v14, v13")
    a.label("L_gw0")
    a("ds_read_b32 v15, v0")
    a("s_waitcnt lgkmcnt(0)")
    a("v_cmp_ge_u32 vcc, s37, v15")
    a("s_cbranch_vccnz L_gw0")
    a("s_add_u32 s37, s37, 1")
    for u in range(2):
        for nb in range(4):
            for rd_ in range(2):
                if (u, nb, rd_) != (1, 3, 1): a(wread(u, nb, rd_))
    n = vm.need({'X'})
    if n is not None: a(f"s_waitcnt vmcnt({n})")
    for q in range(4):
        for i in range(2): a(f"v_permlane16_swap_b32 v{XT+4*q+i}, v{XT+4*q+2+i}")
    a("s_nop 1")
    for j in range(16):
        a(f"v_lshlrev_b32 v{ACC+2*j}, 16, v{XT+j}")
        a(f"v_and_b32 v{ACC+2*j+1}, 0xffff0000, v{XT+j}")
    a("s_mov_b32 s29, 0")
    if pf & 2:
        a("v_mov_b32 v240, v236")
        a("v_mov_b32 v241, v237")
    if prof and not o.get("tr"): prof_stamp(a, 1)
    if o.get("prioG", 0): a(f"s_setprio {o['prioG']}")
    HB = o.get("HB", 1)
    FLI = 28 - HB
    P = o.get("P", 25)
    assert P + DH <= 28 and P + DW <= 28 and FLI >= P and DW <= NWS - 2
    sp = o.get("sigpos", (0, 3)); fp = o.get("frdpos", (1, 3)); cp = (2, 1)
    duty = o.get("duty", 1)
    nx = [8 * DH]
    labs = []
    def stage(i):
        items = []
        k = i % NHS if i < P else i
        if k not in labs and i + 1 < NST: labs.append(k)
        def I(ls):
            for l in ls: items.append(("ins", l))
        last = i + 1 == NST
        if i < P and 0 < duty < NHS:
            if k == 0: I(["s_setprio 1"])
            if k == duty: I(["s_setprio 0"])
        wg = None
        for t in range(4):
            u = 4*i + t
            if i < P: wok = t == 0
            else: wok = nw[0] < NST and nw[0] <= i + NWS - (1 if t == 3 else 2) and (i < FLI or t == 3)
            for m in range(8):
                nb, tt = m >> 1, m & 1
                if m == 0: items.append(("wait", "vmcnt", vm.need({("H", u)})))
                if tt == 0: items.append(("wait", "lgkmcnt", lg.need({("A", u, nb)})))
                c = vr(ACC + 16*tt + 4*nb, 4)
                I([f"v_mfma_f32_16x16x32_bf16 {c}, {vr(FB+16*(u&1)+4*nb,4)}, {vr(HS+8*(u % NH)+4*tt,4)}, {c}"])
                if (t, m) == cp and not last:
                    items.append(("wait", "lgkmcnt", lg.need({("F", i)})))
                    I(["v_cmp_ge_u32 vcc, s37, v15", f"s_cbranch_vccnz L_dn_slow{k}", f"L_dn_ret{k}:"])
                if (i, t, m) == (FLI, 0, 0): I(["s_branch L_flag", "L_flag_ret:"])
                if pf & 2 and i < P and (k, t, m) == (o.get("pfk", 1), 2, 3):
                    vm.issue("PF")
                    I(["global_load_dword v242, v[240:241], off"])
                if tt == 1:
                    if u + 2 < KT: I([wread(u + 2, nb, 0)])
                else:
                    pu, pn = (u, nb - 1) if nb else (u - 1, 3)
                    if pu + 2 < KT: I([wread(pu + 2, pn, 1)])
                if not last:
                    if (t == 1 and tt == 0 and nb): I([f"v_add_u32 v{8+nb-1}, s39, v{8+nb-1}"])
                    if (t, m) == (2, 0): I([f"v_add_u32 v11, s39, v11"])
                    if (t, m) == (0, 6): I(["s_add_u32 s38, s38, 1", f"s_cmp_eq_u32 s38, {NWS}", "s_cselect_b32 s39, s47, s46", "s_cselect_b32 s38, 0, s38"])
                    if (t, m) == (sp[0], sp[1] - 1): I(["v_add_u32 v13, 1, v13"])
                    if (t, m) == tuple(sp):
                        items.append(("wait", "vmcnt", vm.need({("W", i + 1)})))
                        lg.issue(("SG", i))
                        I(["ds_write_b32 v14, v13"])
                    if (t, m) == tuple(fp):
                        lg.issue(("F", i))
                        I(["ds_read_b32 v15, v0"])
                    if (t, m) == (0, 2): I(["s_add_u32 s37, s37, 1"])
                if wok:
                    if m == 1:
                        if nw[0] == 28: I(["s_mov_b32 s8, s52", "s_mov_b32 s9, s53", f"s_mov_b32 s10, {1024*2048}", "s_mov_b32 s33, s61"])
                        I(wm0())
                    if 2 <= m < 6: I(wq(nw[0], m - 2))
                    if m == 5: nw[0] += 1
                late = m - 6 if m >= 6 else -1
                free = 2 * (u + NH) + late
                if i < P: lim = 2 * (u + 4 * DH) + late
                elif (i, t, m) < (FLI, 0, 0): lim = 2 * 112 - 1
                else: lim = min(2 * KT - 1, max(2 * (u + DT) + late, 2 * (112 + DT) - 1))
                for rep in range(o.get("burst", 1) if i >= FLI else 1):
                    if nx[0] <= min(free, lim):
                        I(hload(nx[0] >> 1, nx[0] & 1)); nx[0] += 1
        return items
    st = [stage(i) for i in range(NST)]
    a("s_sub_u32 s37, s37, 1")
    a.label("L_dn_loop")
    for k in range(NHS):
        merge_emit(a, st[k:P:NHS])
        if k == (P - 1) % NHS:
            a(f"s_cmp_eq_u32 s29, {(P - 1) // NHS}")
            a("s_cbranch_scc1 L_dn_tail")
    a("s_add_u32 s29, s29, 1")
    a("s_branch L_dn_loop")
    for k in labs:
        a.label(f"L_dn_slow{k}")
        a("ds_read_b32 v15, v0")
        a("s_waitcnt lgkmcnt(0)")
        a("v_cmp_ge_u32 vcc, s37, v15")
        a(f"s_cbranch_vccnz L_dn_slow{k}")
        a(f"s_branch L_dn_ret{k}")
    a.label("L_flag")
    if prof and not o.get("tr"): prof_stamp(a, 2)
    a.label("L_flagl")
    a("ds_read_b32 v1, v12")
    a("s_waitcnt lgkmcnt(0)")
    a("v_readfirstlane_b32 s59, v1")
    a("s_cmp_lg_u32 s59, 0")
    a("s_cbranch_scc1 L_flagd")
    a(f"s_sleep {o.get('gsleep', 1)}")
    a("s_branch L_flagl")
    a.label("L_flagd")
    if prof: prof_stamp(a, 1 if o.get("tr") else 3); a("s_waitcnt lgkmcnt(0)")
    if o.get("prioW", 0): a(f"s_setprio {o['prioW']}")
    a("s_branch L_flag_ret")
    a.label("L_dn_tail")
    if "prioT" in o: a(f"s_setprio {o['prioT']}")
    for i in range(P, NST):
        if i in o.get("tr", []): a(f"s_memtime s[{84+2*o['tr'].index(i)}:{85+2*o['tr'].index(i)}]")
        merge_emit(a, [st[i]])
    if prof and not o.get("tr"): prof_stamp(a, 4)
    if prof and len(o.get("tr", [])) == 3: prof_stamp(a, 5)
    a("s_nop 7")
    for q in range(4):
        for i in range(4):
            a(f"v_cvt_pk_bf16_f32 v{XT+4*q+i}, v{ACC+8*q+2*i}, v{ACC+8*q+2*i+1}")
    a("s_nop 0")
    for q in range(4):
        for i in range(2): a(f"v_permlane16_swap_b32 v{XT+4*q+i}, v{XT+4*q+2+i}")
    a("s_nop 1")
    for q in range(4):
        a(f"buffer_store_dwordx4 {vr(XT+4*q,4)}, v3, s[20:23], s{64+(q>>1)} offen offset:{64*(q&1)}{o.get('osc', ' sc1')}")
    if prof:
        a("s_waitcnt vmcnt(0)")
        if not o.get("tr"): prof_stamp(a, 5)
        prof_real(a, 1)
        prof_store(a, 6, 4, 79, 2, nwaves=8)
    a("s_endpgm")

def gen_s3k(a, name, o):
    R = o.get("R", 5)
    WB = KVBASE + R * KSLOT
    SYNC = WB + o.get("NWS", 7) * 16384
    kernel_begin(a, name)
    a("s_cmp_ge_u32 s2, 256")
    a("s_cbranch_scc1 L_s3_end")
    if o.get("prof"): prof_stamp(a, 0); prof_real(a, 0)
    a("s_load_dwordx2 s[50:51], s[0:1], 72")
    a("s_load_dwordx2 s[48:49], s[0:1], 48")
    a("s_load_dwordx2 s[52:53], s[0:1], 16")
    a("s_load_dwordx2 s[54:55], s[0:1], 0")
    a("s_load_dwordx2 s[44:45], s[0:1], 56")
    a("v_lshrrev_b32 v15, 6, v0")
    a("v_and_b32 v1, 63, v0")
    a("v_readfirstlane_b32 s27, v15")
    a("s_and_b32 s28, s27, 3")
    if o.get("prof"): a("s_mov_b32 s79, s27")
    a("s_cmp_ge_u32 s27, 4")
    a("s_cbranch_scc1 L_s3_down")
    a("s_and_b32 s56, s2, 7")
    a("s_lshl_b32 s56, s56, 2")
    a("s_bfe_u32 s57, s2, 0x20003")
    a("s_add_u32 s56, s56, s57")
    a("s_lshr_b32 s57, s2, 5")
    att_body(a, o, SYNC)
    a.label("L_s3_down")
    if o.get("nodown"): a("s_endpgm")
    gemm_body(a, o, WB, SYNC)
    a.label("L_s3_end")
    a("s_endpgm")
    return dict(name=name, grid=256, block=512, lds=SYNC + 64, vgpr=256, accum=256)
```

```python
from gen_common import *

SLOT = 20480
XBASE = 4 * SLOT
CBASE = XBASE + 65536
G1_LDS = CBASE + 1280 + 2048
WS_ST = 0
WS_CS = 0x10000
ONES = 28; ST = 20; CSA = 208; CSP = 228
LOG2E = 1.4426950408889634

def loop_emit(a, iters, nloop, label, cnt, extra=None, tail=None):
    ref = iters[0]
    for it in range(1, nloop):
        assert len(iters[it]) == len(ref), (it, len(iters[it]), len(ref))
        for x, y in zip(iters[it], ref):
            assert x[0] == y[0] and (x[0] == "wait" or x[1] == y[1]), (it, x, y)
    a.label(label)
    for idx, x in enumerate(ref):
        if x[0] == "ins":
            a(x[1])
        else:
            ns = [iters[it][idx][2] for it in range(nloop) if iters[it][idx][2] is not None]
            if ns:
                a(f"s_waitcnt {x[1]}({min(ns)})")
    if extra: extra()
    a(f"s_sub_u32 s{cnt}, s{cnt}, 1")
    a(f"s_cmp_lg_u32 s{cnt}, 0")
    a(f"s_cbranch_scc1 {label}")
    if tail: a.label(tail)
    for it in range(nloop, len(iters)):
        for x in iters[it]:
            if x[0] == "ins": a(x[1])
            elif x[2] is not None: a(f"s_waitcnt {x[1]}({x[2]})")

def gen_g1(a, name, D=2, lg_cap=8, bar_pos=4, prof=False, hack='', nslot=6, sc=' sc1', fv=1, pf=1, srp=13, rd0=8, rdl=20, npre=28, rdp=2, early=0, fd=0):
    kernel_begin(a, name)
    a("s_cmp_ge_u32 s2, 256")
    a("s_cbranch_scc1 L_g1_end")
    if prof: prof_stamp(a, 0); prof_real(a, 0)
    for d, off in ((20, 0), (8, 8), (12, 32), (16, 40), (4, 72), (24, 64)):
        a(f"s_load_dwordx2 s[{d}:{d+1}], s[0:1], {off}")
    if pf:
        a("s_getpc_b64 s[36:37]")
        a.label("L_g1_pc")
        a("s_and_b32 s56, s2, 31")
        a("s_cmp_ge_u32 s56, 28")
        a("s_cselect_b32 s38, L_g1_T2-L_g1_pc, 0")
        a("s_add_u32 s36, s36, s38")
        a("s_addc_u32 s37, s37, 0")
        a("v_lshlrev_b32 v76, 7, v0")
        a("v_mov_b32 v77, s37")
        a("v_add_co_u32 v76, vcc, s36, v76")
        a("v_addc_co_u32 v77, vcc, 0, v77, vcc")
        if pf & 1: a("global_load_dword v78, v[76:77], off")
    a("v_mov_b64 v[72:73], 0")
    a("v_mov_b64 v[74:75], 0")
    a("v_lshrrev_b32 v15, 6, v0")
    a("v_and_b32 v1, 63, v0")
    a("v_readfirstlane_b32 s28, v15")
    a("s_and_b32 s56, s2, 31")
    a("s_lshr_b32 s57, s2, 5")
    a("v_lshrrev_b32 v15, 3, v1")
    a("v_and_b32 v16, 7, v1")
    a("v_lshrrev_b32 v17, 1, v15")
    a("v_xor_b32 v18, v16, v17")
    a("v_lshlrev_b32 v18, 4, v18")
    a("v_lshl_add_u32 v2, v15, 11, v18")
    a("v_xor_b32 v3, 64, v2")
    a("v_lshlrev_b32 v17, 1, v17")
    a("v_xor_b32 v18, v16, v17")
    a("v_lshlrev_b32 v18, 4, v18")
    a("v_lshrrev_b32 v19, 2, v15")
    a("v_and_b32 v20, 3, v15")
    a("v_lshl_add_u32 v19, v19, 3, v20")
    a("s_lshr_b32 s58, s28, 1")
    a("s_lshl_b32 s58, s58, 4")
    a("s_and_b32 s59, s28, 1")
    a("s_lshl_b32 s59, s59, 2")
    a("s_add_u32 s58, s58, s59")
    a("v_add_u32 v19, s58, v19")
    a("v_mul_u32_u24 v20, 6144, v19")
    a("v_add_u32 v20, v20, v18")
    a("s_lshl_b32 s58, s56, 7")
    a("v_add_u32 v4, s58, v20")
    a("v_mul_u32_u24 v21, 7168, v19")
    a("v_add_u32 v21, v21, v18")
    a("s_lshl_b32 s58, s56, 8")
    a("v_add_u32 v5, s58, v21")
    a("s_lshl_b32 s58, s56, 9")
    a(f"s_sub_u32 s58, s58, {28*512-4096}")
    a("v_add_u32 v6, s58, v20")
    a("s_lshl_b32 s42, s28, 14")
    a(f"s_add_u32 s42, s42, {XBASE}")
    a("s_mov_b32 s30, 0")
    a("s_mov_b32 s33, 0")
    a("s_lshl_b32 s41, s28, 10")
    a("s_lshl_b32 s34, s57, 19")
    a("s_lshl_b32 s58, s28, 17")
    a("s_add_u32 s34, s34, s58")
    for d, nbytes in ((20, 2048 * 2048), (8, 1024 * 6144), (12, 1024 * 7168), (16, 1024 * 7168), (4, WS_END), (24, 256)):
        a(f"s_mov_b32 s{d+2}, {nbytes:#x}")
        a(f"s_mov_b32 s{d+3}, 0x00020000")
    n0 = len(a.lines)
    a("v_lshrrev_b32 v18, 5, v1")
    a("v_bfe_u32 v19, v1, 2, 3")
    a("v_and_b32 v20, 3, v1")
    a("v_lshlrev_b32 v21, 11, v18")
    a("v_lshl_add_u32 v21, v19, 7, v21")
    a("v_lshl_add_u32 v21, v20, 3, v21")
    a("v_lshrrev_b32 v19, 1, v19")
    for c in range(4):
        a(f"v_xor_b32 v20, {c}, v19")
        a(f"v_lshl_add_u32 v{8+c}, v20, 5, v21")
        a(f"v_add_u32 v{12+c}, {2*SLOT}, v{8+c}")
    a("v_and_b32 v20, 15, v1")
    a("v_lshrrev_b32 v21, 1, v20")
    a("v_lshrrev_b32 v18, 4, v1")
    a("v_xor_b32 v21, v21, v18")
    a("v_lshlrev_b32 v20, 7, v20")
    a("v_add_u32 v20, s42, v20")
    a("v_lshl_add_u32 v16, v21, 4, v20")
    a("v_xor_b32 v17, 64, v16")
    a("s_lshl_b32 s58, s2, 3")
    a("s_lshl_b32 s59, s28, 1")
    a("s_add_u32 s58, s58, s59")
    a("s_lshl_b32 s79, s58, 3")
    a("s_lshl_b32 s58, s58, 11")
    a("v_and_b32 v20, 31, v1")
    a("v_lshrrev_b32 v21, 5, v1")
    a("v_lshlrev_b32 v20, 4, v20")
    a("v_lshl_add_u32 v20, v21, 11, v20")
    a(f"s_lshl_b32 s59, s2, {(8, 9, 13)[fv]}")
    a(f"s_add_u32 s59, s59, {WS_FLAG:#x}")
    a(f"v_lshlrev_b32 v21, {(2, 3, 7)[fv]}, v1")
    for r in range(4): a(f"v_mov_b32 v{ONES+r}, 0x3f803f80")
    a("v_mov_b32 v7, 1")
    a("v_mov_b32 v19, 1.0")
    a("s_sub_u32 s75, 7, s57")
    a("s_sub_u32 s76, 6, s57")
    a(f"s_cmp_ge_u32 s57, {nslot}")
    a("s_cselect_b32 s75, -1, s75")
    a("s_cselect_b32 s76, 7, s76")
    a("s_cmp_lg_u32 s28, 0")
    a("s_cselect_b32 s76, -1, s76")
    a("s_cmp_eq_u32 s75, 7")
    a("s_cselect_b32 s74, 1, 0")
    a("s_lshl_b32 s78, s56, 3")
    a("s_add_u32 s78, s78, s57")
    a("s_mul_i32 s78, s78, 1280")
    a("s_mul_i32 s77, s28, 320")
    a("s_add_u32 s78, s78, s77")
    a(f"s_add_u32 s78, s78, {WS_CS:#x}")
    a("s_mov_b32 s77, 0xffff0000")
    a("s_mov_b32 s29, 7")
    zs = [f"    v_mfma_f32_32x32x16_bf16 {vr(r,16)}, v[72:75], v[72:75], 0" for r in range(80, 256, 16)]
    zs += [f"    v_mfma_f32_32x32x16_bf16 {ar(r,16)}, v[72:75], v[72:75], 0" for r in list(range(0, 96, 16)) + [CSA]]
    zs += [f"    v_mfma_f32_16x16x32_bf16 {ar(CSA+16,4)}, v[72:75], v[72:75], 0"]
    rest = a.lines[n0:]
    del a.lines[n0:]
    fill = []
    for i, l in enumerate(rest):
        fill.append(l)
        if i % 3 == 2 and zs: fill.append(zs.pop(0))
    fill += zs
    for l in fill[:early]: a.lines.append(l)
    fill = fill[early:]
    a("s_waitcnt lgkmcnt(0)")
    if "pro" in hack: prof_stamp(a, 1)
    k = 0
    for n in range(8):
        a(f"s_add_u32 m0, s42, {n*1024}")
        a(f"s_add_u32 s35, s34, {n*16384}")
        a(f"buffer_load_dwordx4 v{2+(n&1)}, s[20:23], s35 offen lds")
        while k < len(fill) and (k < (n + 1 - fd) * len(fill) / (8 - fd) or "s_cselect" in fill[k] or (k + 1 < len(fill) and "mfma" in fill[k] and "s_cselect" in fill[k+1])):
            a.lines.append(fill[k]); k += 1
    assert k == len(fill)
    a("s_add_u32 s34, s34, 128")
    a("s_cmp_ge_u32 s56, 28")
    a("s_cbranch_scc1 L_g1_T2")
    body(a, 1, D, lg_cap, bar_pos, prof, hack, nslot, sc, pf, srp, rd0, rdl, npre, rdp)
    a.label("L_g1_T2")
    body(a, 2, D, lg_cap, bar_pos, prof, hack, nslot, sc, pf, srp, rd0, rdl, npre, rdp)
    a.label("L_g1_end")
    a("s_endpgm")
    return dict(name=name, grid=256, block=256, lds=G1_LDS, vgpr=256+240, accum=256)

AF = 96; BF = 176
def accreg(nb, tb):
    L, c = nb >> 2, nb & 3
    if L == 0:
        return ("a", (((c >> 1) * 4 + tb) * 2 + (c & 1)) * 4)
    e = ((L - 1) * 4 + c) >> 1
    idx = ((e * 4 + tb) * 2 + (c & 1)) * 4
    if idx < 224: return ("v", 32 + idx)
    return ("a", 64 + idx - 224)

def body(a, typ, D, lg_cap, bar_pos, prof, hack, nslot, sc, pf, srp, rd0, rdl, npre, rdp):
    vm = Counter(63)
    lg = Counter(15)
    def w_dma(stage, n):
        slot = stage % 4
        if n == 0: voff, sr_, so, off = 4, 8, 33, 0
        elif typ == 1: voff, sr_, so, off = 5, (12 if n < 3 else 16), 30, ((n - 1) & 1) * 128
        else: voff, sr_, so, off = 6, 8, 33, (n - 1) * 128
        o = f" offset:{off}" if off else ""
        vm.issue(("W", stage))
        g1 = [f"s_add_u32 m0, s41, {slot*SLOT + n*4096 - off}"]
        g2 = [f"buffer_load_dwordx4 v{voff}, s[{sr_}:{sr_+3}], s{so} offen{o} lds"]
        if n == 4:
            g2.append(f"s_add_u32 s33, s33, {32*6144}")
            if typ == 1: g2.append(f"s_add_u32 s30, s30, {32*7168}")
        return [g1, g2]
    def x_dma(tile, n):
        slot = tile % 2
        vm.issue(("X", tile))
        g1 = [f"s_add_u32 m0, s42, {slot*8192 + n*1024}", f"s_add_u32 s35, s34, {n*16384}"]
        g2 = [f"buffer_load_dwordx4 v{2+(n&1)}, s[20:23], s35 offen lds"]
        if n == 7: g2.append("s_add_u32 s34, s34, 128")
        return [g1, g2]
    def a_read(step, nb, rd):
        slot = step % 4
        L, c = nb >> 2, nb & 3
        lg.issue(("A", step, nb))
        return f"ds_read_b64_tr_b16 {ar(AF+4*nb+2*rd, 2)}, v{8 + c + 4*(slot>>1)} offset:{(slot&1)*SLOT + L*4096 + rd*1024}"
    def b_read(step, tb):
        tile = step >> 1
        lg.issue(("B", step, tb))
        return f"ds_read_b128 {ar(BF+16*(step&1)+4*tb, 4)}, v{16+(step&1)} offset:{(tile&1)*8192 + tb*2048}"

    NS = 32
    sched = {i: [] for i in range(-8, NS)}
    for s in range(-4, NS):
        st = s + D
        if 0 <= st < NS:
            for n in range(5):
                sched[s-1].append(("W", st, n))
    for t in range(-3, 16):
        tl = t + 2
        if 0 <= tl < 16:
            for n in range(8):
                sched[2*t+1 + (0 if n < 5 else 1)].append(("X", tl, n))
    pro = [e for i in range(-8, 0) for e in sched[i]]
    pro.sort(key=lambda e: (e[1] if e[0] == "W" else e[1]*2 - 0.5, e[2]))
    base = "L_g1_pc" if typ == 1 else "L_g1_T2"
    assert not pf & 14
    if pf & 6:
        a(f"s_mov_b32 s38, L_g1_{'tail' if pf & 2 else 'epi'}{typ}-{base}")
        a("v_add_co_u32 v24, vcc, s38, v76")
        a("v_addc_co_u32 v25, vcc, 0, v77, vcc")
    if pf & 8:
        a("s_mov_b32 s38, L_s3_end-s3_kernel")
        a("v_lshlrev_b32 v22, 7, v0")
        a("v_min_u32 v22, s38, v22")
        a(f"s_add_u32 s38, s36, s3_kernel-{base}")
        a("s_addc_u32 s39, s37, 0")
        a("v_mov_b32 v23, s39")
        a("v_add_co_u32 v22, vcc, s38, v22")
        a("v_addc_co_u32 v23, vcc, 0, v23, vcc")
    def srows():
        for q in range(4):
            vm.issue("SR")
            a(f"buffer_load_dwordx4 v[{32+4*q}:{35+4*q}], v20, s[20:23], s58 offen offset:{512*q}")
        vm.issue("FL")
        a("buffer_store_dword v72, v21, s[4:7], s59 offen")
    def dma_text(e):
        g1, g2 = (w_dma if e[0] == "W" else x_dma)(e[1], e[2])
        return "\n".join(g1 + (["s_nop 0"] if len(g1) == 1 else []) + g2)
    for i, e in enumerate(pro[:npre]):
        if i == srp: srows()
        t_ = dma_text(e)
        if i >= 8: a(t_)
    if srp >= npre: srows()
    if "pro" in hack: prof_stamp(a, 2)
    n = vm.need({("W", 0), ("X", 0)})
    a(f"s_waitcnt vmcnt({n})")
    if "pro" in hack: prof_stamp(a, 3)
    a("s_barrier")
    if "pro" in hack: prof_stamp(a, 4)
    rds = [b_read(0, tb) for tb in range(4)] + [a_read(0, nb, rd) for nb in range(20) for rd in range(2)]
    for e in pro[npre:]:
        for q in range(rdp):
            if rds: a(rds.pop(0))
        a(dma_text(e))
    n0 = len(a.lines)
    n = vm.need({'SR'})
    if n is not None: a(f"s_waitcnt vmcnt({n})")
    for i in range(16):
        a(f"v_lshlrev_b32 v{48+2*i}, 16, v{32+i}")
        a(f"v_and_b32 v{49+2*i}, s77, v{32+i}")
    def half_sum(v, t):
        for c in ("quad_perm:[1,0,3,2]", "quad_perm:[2,3,0,1]", "row_half_mirror", "row_mirror"):
            a("s_nop 1")
            a(f"v_add_f32_dpp v{v}, v{v}, v{v} {c} row_mask:0xf bank_mask:0xf")
        a(f"v_mov_b32 v{t}, v{v}")
        a("s_nop 1")
        a(f"v_permlane16_swap_b32 v{v}, v{t}")
        a("s_nop 1")
        a(f"v_add_f32 v{v}, v{v}, v{t}")
    a("v_pk_add_f32 v[32:33], v[48:49], v[50:51]")
    a("v_pk_add_f32 v[34:35], v[52:53], v[54:55]")
    for i in range(4, 16):
        d = 32 + 2*(i & 1)
        a(f"v_pk_add_f32 v[{d}:{d+1}], v[{d}:{d+1}], v[{48+2*i}:{49+2*i}]")
    a("v_pk_add_f32 v[32:33], v[32:33], v[34:35]")
    a("v_add_f32 v32, v32, v33")
    half_sum(32, 33)
    a(f"v_mul_f32 v32, {f32(-1.0/1024)}, v32")
    for i in range(16):
        a(f"v_pk_add_f32 v[{48+2*i}:{49+2*i}], v[{48+2*i}:{49+2*i}], v[32:33] op_sel_hi:[1,0]")
    a("v_pk_mul_f32 v[24:25], v[48:49], v[48:49]")
    a("v_pk_mul_f32 v[26:27], v[50:51], v[50:51]")
    for i in range(2, 16):
        d = 24 + 2*(i & 1)
        a(f"v_pk_fma_f32 v[{d}:{d+1}], v[{48+2*i}:{49+2*i}], v[{48+2*i}:{49+2*i}], v[{d}:{d+1}]")
    a("v_mov_b32 v22, v32")
    for r in range(32, 80, 16): a(f"v_mfma_f32_32x32x16_bf16 {vr(r,16)}, v[80:83], v[80:83], 0")
    a("v_pk_add_f32 v[24:25], v[24:25], v[26:27]")
    a("v_add_f32 v24, v24, v25")
    half_sum(24, 25)
    a(f"v_mul_f32 v24, {f32(1.0/1024)}, v24")
    a("v_cvt_pk_bf16_f32 v23, v22, v24")
    a("v_lshlrev_b32 v20, 16, v23")
    a("v_and_b32 v24, s77, v23")
    a(f"v_add_f32 v24, {f32(1e-5)}, v24")
    a("v_cvt_pk_bf16_f32 v24, v24, v24")
    a("v_and_b32 v24, s77, v24")
    a("v_sqrt_f32 v24, v24")
    a("v_lshrrev_b32 v18, 5, v1")
    a("v_cvt_pk_bf16_f32 v24, v24, v24")
    a("v_and_b32 v24, s77, v24")
    a("v_rcp_f32 v21, v24")
    a("v_lshlrev_b32 v18, 3, v18")
    st_ = a.lines[n0:]
    del a.lines[n0:]
    for l in rds[:rd0]: a(l)
    rds = rds[rd0:]
    k = 0
    for i, l in enumerate(st_):
        a.lines.append(l)
        while k < len(rds) and k < (i + 1) * len(rds) / (len(st_) - rdl): a(rds[k]); k += 1
    assert k == len(rds)
    a("s_mov_b32 exec_lo, 1")
    a("s_mov_b32 exec_hi, 1")
    vm.issue("SS")
    a(f"buffer_store_dwordx2 v[20:21], v18, s[4:7], s79 offen offset:{WS_ST} sc1")
    a("s_mov_b64 exec, -1")
    if "pro" in hack: prof_stamp(a, 5)
    if prof and "pro" not in hack: a("s_waitcnt lgkmcnt(0)"); prof_stamp(a, 1); a("s_waitcnt lgkmcnt(0)")

    hooks = {}
    def hook(i, m, f): hooks.setdefault((i, m), []).append(f)
    def ins(*ls): return lambda: [("ins", l) for l in ls]
    def h_poll():
        vm.issue("PL")
        return [("ins", "buffer_load_dword v18, off, s[24:27], 0 sc1")]
    hook(28, 79, h_poll)
    def h_pf(r):
        def f():
            vm.issue("PF")
            return [("ins", f"global_load_dword v27, v[{r}:{r+1}], off")]
        return f
    if pf & 2:
        for i in range(0, 32, 4): hook(i, 7, h_pf(24))
    if pf & 4: hook(28, 7, h_pf(24))
    if pf & 8: hook(28, 11, h_pf(22))
    hook(29, 40, ins("v_and_b32 v4, 15, v1", "v_lshrrev_b32 v3, 4, v1"))
    hook(29, 42, ins("v_mul_u32_u24 v2, 1280, v3", f"v_cmp_gt_u32 vcc, {nslot-4}, v3"))
    hook(29, 44, ins("v_lshl_add_u32 v2, v4, 2, v2", "v_lshlrev_b32 v4, 3, v4"))
    hook(29, 46, ins("v_add_u32 v3, 5120, v2", "v_mov_b32 v5, 0x40000000"))
    hook(29, 48, ins("v_cndmask_b32 v3, v5, v3, vcc", "s_mul_i32 s78, s56, 10240"))
    hook(29, 50, ins("s_mul_i32 s77, s28, 320", "s_add_u32 s78, s78, s77", f"s_add_u32 s78, s78, {WS_CS:#x}"))
    hook(29, 52, ins("s_lshl_b32 s79, s57, 11", "s_lshl_b32 s77, s28, 9", "s_add_u32 s79, s79, s77"))
    def h_chk():
        return [("wait", "vmcnt", vm.need({"PL"})), ("ins", "v_readfirstlane_b32 s77, v18"),
                ("ins", "s_cmp_lt_u32 s77, 256"), ("ins", f"s_cbranch_scc1 L_slow{typ}"), ("ins", f"L_slowr{typ}:")]
    PC = 62
    hook(29, PC, h_chk)
    def h_ld(q):
        def f():
            vm.issue("HL")
            if q < 10: return [("ins", f"buffer_load_dword a{CSP+q}, v{2+(q&1)}, s[4:7], s78 offen offset:{64*(q>>1)} sc1")]
            tb = q - 10
            return [("ins", f"buffer_load_dwordx2 v[{ST+2*tb}:{ST+2*tb+1}], v4, s[4:7], s79 offen offset:{WS_ST+128*tb} sc1")]
        return f
    for q in range(14): hook(29, PC + 1 + q, h_ld(q))
    hook(31, 30, lambda: [("wait", "vmcnt", vm.need({"HL"}))])
    for q in range(10):
        c_ = ar(CSA + 4*(q >> 1), 4)
        hook(31, 30 + q, ins(f"v_mfma_f32_16x16x4_f32 {c_}, a{CSP+q}, v19, {c_}"))
    hook(31, 20, ins("v_and_b32 v2, 48, v1", "s_mul_i32 s77, s28, 320", f"s_add_u32 s77, s77, {CBASE}"))
    hook(31, 22, ins("v_add_u32 v3, s77, v2", f"v_add_u32 v0, {CBASE}, v2"))
    hook(31, 56, ins("s_mov_b32 exec_lo, 0x10001", "s_mov_b32 exec_hi, 0x10001",
                     *[f"ds_write_b128 v3, {ar(CSA+4*q,4)} offset:{64*q}" for q in range(5)], "s_mov_b64 exec, -1"))
    if typ == 2:
        hook(31, 24, ins("s_lshl_b32 s77, s28, 9", f"s_add_u32 s77, s77, {CBASE+1280}", "v_lshrrev_b32 v4, 1, v4"))
        hook(31, 26, ins("v_add_u32 v5, s77, v4", "v_add_u32 v6, s77, v2", f"v_add_u32 v4, {CBASE}, v4"))
        hook(31, 44, ins("s_mov_b64 exec, 0xffff",
                         *[f"ds_write2_b32 v5, v{ST+2*tb}, v{ST+2*tb+1} offset0:{16*tb} offset1:{64+16*tb}" for tb in range(4)], "s_mov_b64 exec, -1"))
    hook(31, 70, ins("s_waitcnt lgkmcnt(0)", "s_barrier"))
    def gen_step(i):
        items = []
        dm = list(sched[i])
        ws_ = [e for e in dm if e[0] == "W"]; xs_ = [e for e in dm if e[0] == "X"]
        dm = []
        while ws_ or xs_:
            if xs_: dm.append(xs_.pop(0))
            if ws_: dm.append(ws_.pop(0))
        last = (i == NS - 1)
        rq = []
        dq = []
        cand = [m for m in range(80) if m % 4 == 1 and m > bar_pos + 8]
        pos = {}
        for q, e in enumerate(dm):
            pos[cand[int(q * len(cand) / len(dm))]] = e
        for m in range(80):
            nb, t = m >> 2, m & 3
            tb = t if (nb & 1) == 0 else 3 - t
            n = lg.need({("A", i, nb), ("B", i, tb)}, cap=lg_cap)
            items.append(("wait", "lgkmcnt", n))
            A = ar(AF + 4*nb, 4); B = ar(BF + 16*(i&1) + 4*tb, 4)
            if typ == 2 and nb >= 4: A, B = B, A
            p_, r_ = accreg(nb, tb)
            c_ = vr(r_, 4, p_)
            items.append(("ins", f"v_mfma_f32_16x16x32_bf16 {c_}, {A}, {B}, {c_}"))
            if m == bar_pos and "nocs" not in hack:
                k = i & 3 if i < 28 else i - 24
                if i < 28:
                    items.append(("ins", "s_cmp_lg_u32 s74, 0"))
                    items.append(("ins", f"s_cbranch_scc1 L_cs{typ}_{k}"))
                else:
                    items.append(("ins", f"s_branch L_cs{typ}_{k}"))
                items.append(("ins", f"L_csr{typ}_{k}:"))
            for x in hooks.get((i, m), []):
                items += x()
            if not last:
                if t == 3:
                    rq.append(("A", nb, 0)); rq.append(("A", nb, 1))
                if m == bar_pos:
                    need = {("W", i+1)}
                    if i & 1: need.add(("X", (i+1) >> 1))
                    items.append(("wait", "vmcnt", vm.need(need)))
                    items.append(("ins", "s_barrier"))
                    if i < 28 and (i & 3) == 2:
                        items.append(("ins", "s_cmp_eq_u32 s29, s76"))
                        items.append(("ins", f"s_cbranch_scc1 L_sig{typ}"))
                        items.append(("ins", f"L_sigr{typ}:"))
                    rq = [("B", tb_) for tb_ in range(4)] + rq
                elif m > bar_pos and rq and not dq and m not in pos:
                    e = rq.pop(0)
                    items.append(("ins", b_read(i+1, e[1]) if e[0] == "B" else a_read(i+1, e[1], e[2])))
            if dq:
                for l in dq: items.append(("ins", l))
                dq = []
            if m in pos:
                e = pos[m]
                g1, g2 = (w_dma if e[0] == "W" else x_dma)(e[1], e[2])
                for l in g1: items.append(("ins", l))
                dq = g2
        assert not dq
        while rq:
            e = rq.pop(0)
            items.append(("ins", a_read(i+1, e[1], e[2])))
        return items

    iters = []
    for it in range(8):
        items = []
        for i in range(4*it, 4*it+4):
            items += gen_step(i)
        iters.append(items)
    def extra():
        a("s_cmp_eq_u32 s29, s75")
        a(f"s_cbranch_scc1 L_cst{typ}")
        a.label(f"L_cstr{typ}")
        a("s_sub_u32 s77, s29, 1")
        a("s_cmp_eq_u32 s77, s75")
        a("s_cselect_b32 s74, 1, 0")
        a(f"s_cmp_le_u32 s77, {7-nslot}")
        a("s_cselect_b32 s74, 1, s74")
        if "trace" in hack:
            a("s_memtime s[98:99]")
            a("s_memrealtime s[100:101]")
            a("s_waitcnt lgkmcnt(0)")
            a("s_sub_u32 s98, s98, s80")
            a("s_sub_u32 s100, s100, s92")
            a("v_cmp_eq_u32 vcc, s29, v1")
            a("v_mov_b32 v29, s98")
            a("v_cndmask_b32 v30, v30, v29, vcc")
            a("v_mov_b32 v29, s100")
            a("v_cndmask_b32 v31, v31, v29, vcc")
    loop_emit(a, iters, 7, f"L_g1_loop{typ}", 29, extra, f"L_g1_tail{typ}")
    a.label(f"L_g1_epi{typ}")

    if prof and "pro" not in hack: prof_stamp(a, 2)
    if prof: a("s_waitcnt lgkmcnt(0)")
    lg = Counter(15)
    def cread(nb, r):
        lg.issue(("C", nb))
        a(f"ds_read_b128 {vr(r,4)}, v0 offset:{64*nb}")
    def lw(tags):
        n = lg.need(set(tags))
        if n is not None: a(f"s_waitcnt lgkmcnt({n})")
    def smread(tp):
        for half in range(2):
            for q in range(2):
                lg.issue(("SM", tp))
                a(f"ds_read_b128 {vr(8+8*half+4*q,4)}, v6 offset:{256*q + 64*(2*tp+half)}")
    if typ == 1:
        cread(4, 12); cread(5, 16)
    else:
        smread(0)
        for q in range(4):
            lg.issue(("CV", 0))
            a(f"ds_read2_b32 v[{24+2*q}:{25+2*q}], v4 offset0:{16*(4+2*q)} offset1:{16*(5+2*q)}")
        a("v_add_u32 v4, 768, v4")
    a("v_and_b32 v7, 48, v1")
    a("v_lshlrev_b32 v7, 5, v7")
    a("v_bfe_u32 v2, v1, 3, 1")
    a("v_lshl_add_u32 v2, v2, 8, v7")
    a("v_and_b32 v3, 7, v1")
    a("v_lshl_add_u32 v2, v3, 4, v2")
    if typ == 1:
        a("v_lshlrev_b32 v3, 4, v1")
    else:
        a("v_and_b32 v3, 15, v1")
        a("v_lshl_add_u32 v3, v3, 4, v7")
    a("s_lshl_b32 s58, s57, 3")
    a("s_lshl_b32 s59, s28, 1")
    a("s_add_u32 s58, s58, s59")
    a("s_and_b32 s60, s56, 15")
    a("s_lshl_b32 s60, s60, 7")
    a("s_add_u32 s60, s60, s58")
    a("s_cmp_ge_u32 s56, 16")
    a("s_cselect_b32 s61, 12, 11")
    a(f"s_mov_b32 s62, {WS_Q:#x}")
    a(f"s_cselect_b32 s62, {WS_KV:#x}, s62")
    a(f"s_mov_b32 s44, {f32(32**-0.5 * LOG2E)}")
    a("s_cselect_b32 s44, 1.0, s44")
    a("s_mov_b32 s45, s44")
    for hh in range(2):
        for tp in range(2):
            d = 64 + hh*2 + tp
            a(f"s_add_u32 s{d}, s60, {hh*64 + tp}")
            a(f"s_lshl_b32 s{d}, s{d}, s61")
            a(f"s_add_u32 s{d}, s{d}, s62")
    if typ == 1:
        a("s_lshr_b32 s60, s58, 2")
        a("s_mul_i32 s60, s60, 144")
        a("s_lshl_b32 s61, s56, 2")
        a("s_add_u32 s60, s60, s61")
        a("s_lshl_b32 s60, s60, 1")
        a("s_and_b32 s61, s28, 1")
        a("s_add_u32 s60, s60, s61")
        a("s_lshl_b32 s60, s60, 12")
        a(f"s_add_u32 s70, s60, {WS_H:#x}")
        a(f"s_mov_b32 s46, {f32(-LOG2E)}")
        a("s_mov_b32 s47, s46")
        a("s_mov_b32 s72, 1.0")
        a("s_mov_b32 s73, 1.0")
    else:
        a("s_sub_u32 s60, s56, 28")
        a("s_lshl_b32 s60, s60, 9")
        a("s_add_u32 s60, s60, s58")
        a("s_lshl_b32 s60, s60, 12")
        a(f"s_add_u32 s70, s60, {WS_KV:#x}")
        a(f"s_add_u32 s71, s70, 4096")
    LO = "op_sel_hi:[1,0,1]"; HI = "op_sel:[0,1,0] op_sel_hi:[1,1,1]"
    def p2(r): return f"v[{r}:{r+1}]"
    def corr(d, c, tb, stb):
        for r in range(2):
            a(f"v_pk_fma_f32 {p2(d+2*r)}, {p2(c+2*r)}, {p2(stb+2*tb)}, {p2(d+2*r)} {LO}")
    def qk_line(stb, rq, cb, tmp):
        for tb in range(4): a(f"v_mul_f32 v{rq+2*tb}, s44, v{stb+2*tb+1}")
        for hh in range(2):
            lw([("C", 2*hh), ("C", 2*hh+1)])
            for tb in range(4):
                base = (hh*4 + tb) * 8
                t0 = tmp + 8 * (tb & 1)
                for r in range(8):
                    a(f"v_accvgpr_read_b32 v{t0+r}, a{base+r}")
                corr(t0, cb[2*hh], tb, stb); corr(t0 + 4, cb[2*hh+1], tb, stb)
                for r in range(4):
                    a(f"v_pk_mul_f32 {p2(t0+2*r)}, {p2(t0+2*r)}, {p2(rq+2*tb)} op_sel_hi:[1,0]")
                for r in range(4):
                    a(f"v_cvt_pk_bf16_f32 v{t0+r}, v{t0+2*r}, v{t0+2*r+1}")
                a(f"buffer_store_dwordx4 {vr(t0,4)}, v2, s[4:7], s{64+hh*2+(tb>>1)} offen offset:{(tb&1)*128}{sc}")
    if typ == 1:
        PQ = 4
        for tb in range(4):
            a(f"v_mul_f32 v{PQ+2*tb}, s46, v{ST+2*tb+1}")
            a(f"v_rcp_f32 v{PQ+2*tb+1}, v{ST+2*tb+1}")
        cregs = {0: [12, 16, 12, 16], 1: [36, 44, 52, 60], 2: [160, 164, 168, 172], 3: [68, 76, 84, 92]}
        def nbs(e): return [4+2*e, 5+2*e, 12+2*e, 13+2*e]
        a("s_nop 3")
        for e in range(4):
            cb = cregs[e]; nb_ = nbs(e)
            if e in (1, 2):
                for q in range(4): cread(nbs(e+1)[q], cregs[e+1][q])
            lw([("C", nb_[0]), ("C", nb_[1])])
            if e == 0:
                for tb in range(4):
                    R = 32 + tb*8
                    corr(R, cb[0], tb, ST); corr(R + 4, cb[1], tb, ST)
                cread(nb_[2], cb[2]); cread(nb_[3], cb[3])
            for tb in range(4):
                R = 32 + (e*4+tb)*8
                pu, U = accreg(12 + 2*e, tb)
                if pu == "a":
                    for r in range(8):
                        a(f"v_accvgpr_read_b32 v{176+r}, a{U+r}")
                    U = 176
                if e > 0:
                    corr(R, cb[0], tb, ST); corr(R + 4, cb[1], tb, ST)
                for r in range(4):
                    a(f"v_pk_mul_f32 {p2(R+2*r)}, {p2(R+2*r)}, {p2(PQ+2*tb)} op_sel_hi:[1,0]")
                for r in range(8):
                    a(f"v_exp_f32 v{R+r}, v{R+r}")
                lw([("C", nb_[2]), ("C", nb_[3])])
                corr(U, cb[2], tb, ST); corr(U + 4, cb[3], tb, ST)
                for r in range(4):
                    a(f"v_pk_fma_f32 {p2(R+2*r)}, {p2(R+2*r)}, {p2(PQ+2*tb)}, {p2(PQ+2*tb)} op_sel:[0,1,1] op_sel_hi:[1,1,1]")
                for r in range(8):
                    a(f"v_rcp_f32 v{R+r}, v{R+r}")
                for r in range(4):
                    a(f"v_pk_mul_f32 {p2(R+2*r)}, {p2(R+2*r)}, {p2(U+2*r)}")
                for r in range(4):
                    a(f"v_cvt_pk_bf16_f32 v{R+r}, v{R+2*r}, v{R+2*r+1}")
                a(f"buffer_store_dwordx4 v[{R}:{R+3}], v3, s[4:7], s70 offen offset:{tb*1024}{sc}")
                if e == 0 and tb == 1:
                    for q in range(4): cread(q, 160 + 4*q)
            if e < 3:
                a("s_add_u32 s70, s70, 8192")
            if e == 0:
                for q in range(4): cread(nbs(1)[q], cregs[1][q])
                qk_line(ST, 12, [160, 164, 168, 172], 176)
    else:
        a("s_nop 3")
        for tp in range(2):
            lw([("SM", tp)])
            for nb in range(4, 20):
                hd, db = (nb - 4) >> 1, nb & 1
                lw([("CV", (nb - 4) >> 3)])
                cp = (24 if nb < 12 else 40 - 8) + ((nb - 4) & ~1)
                rr = []
                for half in range(2):
                    p_, r_ = accreg(nb, 2*tp + half)
                    if p_ == "a":
                        t = 72 + 4*half + 32*db
                        for r in range(4):
                            a(f"v_accvgpr_read_b32 v{t+r}, a{r_+r}")
                        r_ = t
                    rr.append(r_)
                for half in range(2):
                    for r in range(2):
                        d = p2(rr[half] + 2*r)
                        a(f"v_pk_fma_f32 {d}, {p2(8+8*half+2*r)}, {p2(cp)}, {d} {HI if db else LO}")
                for half in range(2):
                    for r in range(2):
                        d = p2(rr[half] + 2*r)
                        a(f"v_pk_mul_f32 {d}, {d}, {p2(12+8*half+2*r)}")
                for half in range(2):
                    for r in range(2):
                        a(f"v_cvt_pk_bf16_f32 v{rr[0]+2*half+r}, v{rr[half]+2*r}, v{rr[half]+2*r+1}")
                a(f"buffer_store_dwordx4 {vr(rr[0],4)}, v3, s[4:7], s{70+tp} offen offset:{2048 + db*256}{sc}")
                if db and hd < 7:
                    a(f"s_add_u32 s{70+tp}, s{70+tp}, {64*4096}")
                if tp == 0 and nb == 5:
                    for q in range(4):
                        lg.issue(("CV", 1))
                        a(f"ds_read2_b32 v[{40+2*q}:{41+2*q}], v4 offset0:{16*(2*q)} offset1:{16*(2*q+1)}")
            if tp == 0:
                smread(1)
                for q in range(4): cread(q, [136, 140, 168, 172][q])
                for tb in range(4):
                    lg.issue("S1")
                    a(f"ds_read2_b32 {p2(200+2*tb)}, v5 offset0:{16*tb} offset1:{64+16*tb}")
        lw(["S1"])
        qk_line(200, 232, [136, 140, 168, 172], 8)
    if prof:
        if "pro" not in hack: prof_stamp(a, 3)
        a("s_waitcnt vmcnt(0)")
        if "pro" not in hack: prof_stamp(a, 4)
        prof_real(a, 1)
        prof_store(a, 6 if "pro" in hack else 5, 4, 28, 1)
        if "trace" in hack:
            a("s_add_u32 s96, s96, 0x40000")
            a("v_mbcnt_lo_u32_b32 v0, -1, 0")
            a("v_lshlrev_b32 v0, 3, v0")
            a("v_cmp_gt_u32 vcc, 64, v0")
            a("s_and_saveexec_b64 s[98:99], vcc")
            a("buffer_store_dwordx2 v[30:31], v0, s[4:7], s96 offen")
    a("s_endpgm")
    for k in range(8):
        if "nocs" in hack: break
        a.label(f"L_cs{typ}_{k}")
        a("s_waitcnt lgkmcnt(0)")
        for w in range(4):
            if w < 3:
                a(f"s_cmp_lg_u32 s28, {w}")
                a(f"s_cbranch_scc1 L_cs{typ}_{k}_{w+1}")
            for q in range(5):
                c_ = ar(CSA + 4*q, 4)
                a(f"v_mfma_f32_16x16x32_bf16 {c_}, {ar(AF+4*(5*w+q),4)}, {vr(ONES,4)}, {c_}")
            a(f"s_branch L_csr{typ}_{k}")
            if w < 3: a.label(f"L_cs{typ}_{k}_{w+1}")
    a.label(f"L_cst{typ}")
    a("v_and_b32 v18, 48, v1")
    a("s_mov_b32 exec_lo, 0x10001")
    a("s_mov_b32 exec_hi, 0x10001")
    for q in range(5):
        a(f"buffer_store_dwordx4 {ar(CSA+4*q,4)}, v18, s[4:7], s78 offen offset:{64*q} sc1")
    a("s_mov_b64 exec, -1")
    a("s_nop 1")
    for r in range(20): a(f"v_accvgpr_write_b32 a{CSA+r}, 0")
    a(f"s_branch L_cstr{typ}")
    a.label(f"L_sig{typ}")
    a("s_mov_b64 exec, 1")
    a("buffer_atomic_add v7, off, s[24:27], 0 sc1")
    a("s_mov_b64 exec, -1")
    a(f"s_branch L_sigr{typ}")
    a.label(f"L_slow{typ}")
    a("s_mov_b32 s29, 0x40000")
    a.label(f"L_slowl{typ}")
    a("buffer_load_dword v18, off, s[24:27], 0 sc1")
    a("s_waitcnt vmcnt(0)")
    a("v_readfirstlane_b32 s77, v18")
    a("s_cmp_ge_u32 s77, 256")
    a(f"s_cbranch_scc1 L_slowr{typ}")
    a("s_sleep 2")
    a("s_sub_u32 s29, s29, 1")
    a("s_cmp_lg_u32 s29, 0")
    a(f"s_cbranch_scc1 L_slowl{typ}")
    a(f"s_branch L_slowr{typ}")
```
